```python
import torch

def _softmax(x, axis=-1):
    return torch.softmax(x, dim=axis)
def _gelu(x):
    return torch.nn.functional.gelu(x, approximate="tanh")
def _silu(x):
    return torch.nn.functional.silu(x)
def _sigmoid(x):
    return torch.sigmoid(x)
def _layernorm(x, axis=-1, eps=1e-5):
    m = x.mean(dim=axis, keepdim=True)
    v = x.var(dim=axis, keepdim=True, unbiased=False)
    return (x - m) / torch.sqrt(v + eps)
def _scatter_add(tgt, idx, src, axis=0):
    return tgt.clone().index_add_(axis, idx, src)
def _segment_sum(src, seg, n):
    out = torch.zeros((n,) + src.shape[1:], dtype=src.dtype)
    return out.index_add_(0, seg, src)
def _pad(x, pw):
    flat = tuple(v for pair in reversed(pw) for v in pair)
    return torch.nn.functional.pad(x, flat)

kernel_name = 'gated_mix__ssm_conv_s5__grouped_kv_mqa__prompt'

def setup_inputs():

    _w = (lambda a: (lambda t: t.to(torch.bfloat16) if t.is_floating_point() else t)(torch.as_tensor(a)))
    def _A_setup():
        B, S, D = 1, 2048, 576
        P = D
        Lambda_re = -0.5 * (lambda _x: torch.exp(torch.as_tensor(_x)))((lambda *s: torch.randn(*s, dtype=torch.bfloat16) * 0.2)(P))
        Lambda_im = (lambda *s: torch.randn(*s, dtype=torch.bfloat16) * 0.4)(P) * 1.0
        B_re = (lambda *s: torch.randn(*s, dtype=torch.bfloat16) * 0.2)(P, D) * (D ** -0.5)
        B_im = (lambda *s: torch.randn(*s, dtype=torch.bfloat16) * 0.2)(P, D) * (D ** -0.5)
        C_re = (lambda *s: torch.randn(*s, dtype=torch.bfloat16) * 0.2)(D, P) * (P ** -0.5)
        C_im = (lambda *s: torch.randn(*s, dtype=torch.bfloat16) * 0.2)(D, P) * (P ** -0.5)
        log_dt = (lambda *s: torch.randn(*s, dtype=torch.bfloat16) * 0.2)(P) * 0.3 - 2.0
        Dskip = (lambda *s: torch.randn(*s, dtype=torch.bfloat16) * 0.05)(D)
        return {
            "x": _w((lambda *s: torch.randn(*s, dtype=torch.bfloat16) * 0.05)(B, S, D)),
            "Lambda_re": _w(Lambda_re),
            "Lambda_im": _w(Lambda_im),
            "B_re": _w(B_re),
            "B_im": _w(B_im),
            "C_re": _w(C_re),
            "C_im": _w(C_im),
            "log_dt": _w(log_dt),
            "Dskip": _w(Dskip),
        }
    _A_in = _A_setup()

    def _B_setup():
        B, S, D, H = 1, 2048, 576, 32
        Dh = D // H
        return {
            "x": _w((lambda *s: torch.randn(*s, dtype=torch.bfloat16) * 0.05)(B, S, D)),
            "wq": _w((lambda *s: torch.randn(*s, dtype=torch.bfloat16) * 0.8)(D, H * Dh)),
            "wk": _w((lambda *s: torch.randn(*s, dtype=torch.bfloat16) * 0.8)(D, Dh)),
            "wv": _w((lambda *s: torch.randn(*s, dtype=torch.bfloat16) * 0.05)(D, Dh)),
            "wo": _w((lambda *s: torch.randn(*s, dtype=torch.bfloat16) * 0.05)(H * Dh, D)),
        }
    _B_in = _B_setup()

    return {
        "A_x": _A_in["x"],
        "A_Lambda_re": _A_in["Lambda_re"],
        "A_Lambda_im": _A_in["Lambda_im"],
        "A_B_re": _A_in["B_re"],
        "A_B_im": _A_in["B_im"],
        "A_C_re": _A_in["C_re"],
        "A_C_im": _A_in["C_im"],
        "A_log_dt": _A_in["log_dt"],
        "A_Dskip": _A_in["Dskip"],
        "B_x": _B_in["x"],
        "B_wq": _B_in["wq"],
        "B_wk": _B_in["wk"],
        "B_wv": _B_in["wv"],
        "B_wo": _B_in["wo"],
        "gate_w": _w((lambda *s: torch.randn(*s, dtype=torch.bfloat16) * 0.05)(576) * 16.0),
    }

def reference(A_x, A_Lambda_re, A_Lambda_im, A_B_re, A_B_im, A_C_re, A_C_im, A_log_dt, A_Dskip, B_x, B_wq, B_wk, B_wv, B_wo, gate_w):
    def _A_ref(x, Lambda_re, Lambda_im, B_re, B_im, C_re, C_im, log_dt, Dskip):
        Bsz, L, H = x.shape
        Lam = Lambda_re + 1j * Lambda_im
        Bmat = B_re + 1j * B_im
        Cmat = C_re + 1j * C_im
        dt = torch.exp(log_dt)
        Lam_bar = torch.exp(dt * Lam)
        B_bar = ((Lam_bar - 1.0) / Lam)[:, None] * Bmat
        Bu = torch.einsum("bld,pd->blp", x + 0j, B_bar)
        h = torch.zeros_like(Bu[:, 0, :])
        hs = []
        for t in range(L):
            h = Lam_bar[None, :] * h + Bu[:, t, :]
            hs.append(h)
        hseq = torch.stack(hs, 1)
        y = 2.0 * torch.einsum("blp,dp->bld", hseq, Cmat).real + x * Dskip[None, None, :]
        return y

    def _B_ref(x, wq, wk, wv, wo):
        B, S, D = x.shape
        H = 32
        Dh = D // H
        q = (lambda x, *d: x.permute(*d))((x @ wq).reshape(B, S, H, Dh), 0, 2, 1, 3)
        k = x @ wk
        v = x @ wv
        scores = torch.einsum("bhqd,bkd->bhqk", q, k) * (Dh ** -0.5)
        p = _softmax(scores, axis=-1)
        o = torch.einsum("bhqk,bkd->bhqd", p, v)
        return (lambda x, *d: x.permute(*d))(o, 0, 2, 1, 3).reshape(B, S, H * Dh) @ wo

    x = A_x
    g = _sigmoid((x * gate_w).sum(-1, keepdims=True))
    a = _A_ref(x, A_Lambda_re, A_Lambda_im, A_B_re, A_B_im, A_C_re, A_C_im, A_log_dt, A_Dskip)
    b = _B_ref(x, B_wq, B_wk, B_wv, B_wo)
    return g * a + (1 - g) * b
```

```python
import re

TRANS = ("v_exp_f32", "v_log_f32", "v_rcp_f32", "v_rsq_f32", "v_sqrt_f32", "v_sin_f32", "v_cos_f32")
NODST_S = ("s_cmp", "s_cbranch", "s_branch", "s_waitcnt", "s_barrier", "s_nop", "s_setprio", "s_sleep",
           "s_endpgm", "s_bitcmp", "s_setpc")


def regs_of(op):
    op = op.strip()
    op = op.lstrip("-")
    if op.startswith("abs(") or op.startswith("|"):
        op = op.replace("abs(", "").replace(")", "").replace("|", "")
    m = re.fullmatch(r"([vsa])\[(\d+):(\d+)\]", op)
    if m:
        return [f"{m.group(1)}{i}" for i in range(int(m.group(2)), int(m.group(3)) + 1)]
    m = re.fullmatch(r"([vsa])(\d+)", op)
    if m:
        return [op]
    if op in ("vcc", "vcc_lo", "vcc_hi"):
        return ["vcc"]
    if op in ("m0",):
        return ["m0"]
    if op in ("exec", "exec_lo", "exec_hi"):
        return ["exec"]
    return []


class Ins:
    def __init__(self, text):
        self.text = text
        t = text.split(";")[0].strip()
        self.label = None
        self.mn = None
        if t.endswith(":"):
            self.label = t[:-1]
            return
        if t.startswith(".") or not t:
            return
        parts = t.split(None, 1)
        self.mn = parts[0]
        rest = parts[1] if len(parts) > 1 else ""
        ops = [o.strip() for o in rest.split(",")] if rest else []
        clean = []
        for o in ops:
            first = o.split()[0] if o.split() else ""
            clean.append(first)
            if len(o.split()) > 1:
                break
        self.ops = clean
        self.mods = rest
        self.states = 1
        if self.mn == "s_nop":
            self.states = int(self.ops[0], 0) + 1
        self.classify()

    def classify(s):
        mn, ops = s.mn, s.ops
        R = lambda i: regs_of(ops[i]) if i < len(ops) else []
        s.kind = None
        s.rd = []; s.wr = []; s.ab = []; s.c = []; s.dpp = []; s.lds_dma = False; s.wide_store = []
        if mn.startswith("v_mfma") or mn.startswith("v_smfmac"):
            s.kind = "mfma"
            s.passes = 8 if "32x32" in mn else 4
            assert "_2b" not in mn and "_4b" not in mn
            s.wr = R(0)
            if mn.startswith("v_smfmac"):
                s.ab = R(1) + R(2) + R(3); s.c = R(0)
            else:
                s.ab = R(1) + R(2); s.c = R(3)
        elif mn.startswith("v_"):
            s.kind = "valu"
            s.wr = R(0)
            rd_from = 1
            if "_co_" in mn:
                s.wr = R(0) + R(1); rd_from = 2
            for i in range(rd_from, len(ops)):
                s.rd += R(i)
            if mn.startswith(("v_fmac", "v_dot2c", "v_writelane")) or "_dpp" in mn:
                s.rd += R(0)
            if "permlane" in mn:
                s.wr = R(0) + R(1); s.rd = R(0) + R(1)
            if "_dpp" in mn:
                s.dpp = R(1)
        elif mn.startswith("ds_"):
            s.kind = "ds"
            if mn.startswith(("ds_read", "ds_bpermute", "ds_swizzle")):
                s.wr = R(0)
                for i in range(1, len(ops)): s.rd += R(i)
            else:
                for i in range(len(ops)): s.rd += R(i)
        elif mn.startswith(("buffer_", "global_")):
            s.kind = "vmem"
            lds = re.search(r"\blds\b", s.mods) is not None
            if "load" in mn and not lds:
                s.wr = R(0)
                for i in range(1, len(ops)): s.rd += R(i)
                if "d16" in mn: s.rd += R(0)
            else:
                for i in range(len(ops)): s.rd += R(i)
                s.lds_dma = lds
                if "store" in mn and ("x4" in mn or "x3" in mn):
                    s.wide_store = R(0) if mn.startswith("buffer_") else R(1)
        elif mn.startswith("s_"):
            s.kind = "salu"
            if mn.startswith(NODST_S):
                for i in range(len(ops)): s.rd += R(i)
            else:
                s.wr = R(0)
                for i in range(1, len(ops)): s.rd += R(i)
        else:
            raise ValueError("unknown instr " + s.text)


class HState:
    def __init__(self):
        self.pos = 0
        self.vw = {}; self.mw = {}; self.mc = {}; self.sw = {}; self.stw = {}; self.m0w = -100

    def copy(self):
        h = HState()
        h.pos = self.pos; h.vw = dict(self.vw); h.mw = dict(self.mw); h.mc = dict(self.mc)
        h.sw = dict(self.sw); h.stw = dict(self.stw); h.m0w = self.m0w
        return h

    def need(self, i):
        p = self.pos
        n = 0
        def req(k, w):
            nonlocal n
            n = max(n, k - (p - w - 1))
        isv = lambda r: r[0] in "va" and r != "vcc"
        if i.kind == "mfma":
            for r in i.ab + i.c:
                if r in self.vw: req(3 if self.vw[r][1].startswith("v_dot") else 2, self.vw[r][0])
            for r in i.ab:
                if r in self.mw: req(self.mw[r][1] + 4, self.mw[r][0])
            for r in i.c:
                if r in self.mw:
                    w, ps, rng = self.mw[r]
                    if not (rng == tuple(i.c) and ps == i.passes): req(ps + 2, w)
            for r in i.wr:
                if r in self.mw and self.mw[r][1] != i.passes: req(self.mw[r][1] + 2, self.mw[r][0])
                if r in self.stw: req(2, self.stw[r])
        elif i.kind == "valu":
            for r in i.rd + i.wr:
                if r in self.mw: req(self.mw[r][1] + 4, self.mw[r][0])
                if r in self.vw and self.vw[r][1].startswith("v_dot"):
                    same_c = self.vw[r][1] == i.mn and r not in regs_of(i.ops[1]) + regs_of(i.ops[2])
                    if not same_c: req(3, self.vw[r][0])
            for r in i.wr:
                if r in self.mc: req(self.mc[r][1] - 1, self.mc[r][0])
                if r in self.stw: req(2, self.stw[r])
            for r in i.rd:
                if r in self.vw and self.vw[r][1].startswith(TRANS) and not i.mn.startswith(TRANS): req(1, self.vw[r][0])
                if not isv(r) and r in self.sw: req(2, self.sw[r])
            for r in i.dpp:
                if r in self.vw: req(2, self.vw[r][0])
            if "permlane" in i.mn:
                for r in i.rd:
                    if r in self.vw: req(2, self.vw[r][0])
            if i.mn.startswith(("v_readlane", "v_readfirstlane")):
                for r in i.rd:
                    if r in self.vw: req(1, self.vw[r][0])
        elif i.kind in ("ds", "vmem"):
            for r in i.rd + i.wr:
                if r in self.mw: req(self.mw[r][1] + 4, self.mw[r][0])
            for r in i.rd:
                if r in self.vw and self.vw[r][1].startswith("v_dot"): req(3, self.vw[r][0])
                if r in self.vw and self.vw[r][1].startswith(TRANS): req(1, self.vw[r][0])
                if not isv(r) and r in self.sw: req(5, self.sw[r])
            for r in i.wr:
                if r in self.stw: req(2, self.stw[r])
                if r in self.mc: req(self.mc[r][1] - 1, self.mc[r][0])
            if i.lds_dma: req(1, self.m0w)
        elif i.kind == "salu":
            for r in i.rd:
                if r in self.sw: req(1, self.sw[r])
            if i.mn.startswith("s_cbranch_vcc") and "vcc" in self.sw: req(1, self.sw["vcc"])
        return n

    def step(self, i):
        p = self.pos + i.states - 1
        if i.kind == "mfma":
            for r in i.c: self.mc[r] = (p, i.passes)
            for r in i.wr:
                self.mw[r] = (p, i.passes, tuple(i.wr)); self.vw.pop(r, None)
        elif i.kind == "valu":
            for r in i.wr:
                if r[0] in "va" and r != "vcc":
                    self.vw[r] = (p, i.mn); self.mw.pop(r, None)
                else:
                    self.sw[r] = p
        elif i.kind in ("ds", "vmem"):
            for r in i.wide_store: self.stw[r] = p
            for r in i.wr:
                self.vw.pop(r, None); self.mw.pop(r, None)
        elif i.kind == "salu":
            for r in i.wr:
                if r == "m0": self.m0w = p
                self.sw.pop(r, None)
        self.pos += i.states


class Asm:
    def __init__(self):
        self.lines = []
        self.nlab = 0

    def __call__(self, text):
        for l in text.split("\n"):
            l = l.strip()
            if l:
                self.lines.append(l)

    def lab(self, base="L"):
        self.nlab += 1
        return f"{base}_{self.nlab}"

    def finalize(self, verbose=False):
        ins = [Ins(l) for l in self.lines]
        out = []
        h = HState()
        branches = []
        npad = 0
        for i in ins:
            if i.mn is None:
                out.append(i); continue
            n = h.need(i)
            if n > 0:
                npad += 1
                nop = Ins(f"s_nop {n-1}")
                if verbose: print("pad", n, "before", i.text)
                out.append(nop); h.step(nop)
            out.append(i); h.step(i)
            if i.mn.startswith(("s_cbranch", "s_branch")):
                branches.append((i, h.copy()))
            if i.mn in ("s_branch", "s_endpgm"):
                h = HState()
        labpos = {i.label: k for k, i in enumerate(out) if i.label}

        def walk(k, h, budget, depth, origin):
            while k < len(out) and budget > 0:
                i = out[k]; k += 1
                if i.mn is None: continue
                n = h.need(i)
                if n > 0:
                    raise RuntimeError(f"hazard across branch '{origin}': need {n} before '{i.text}'")
                h.step(i); budget -= i.states
                if i.mn == "s_endpgm": return
                if i.mn.startswith(("s_cbranch", "s_branch")) and depth < 3:
                    walk(labpos[i.ops[0]], h.copy(), budget, depth + 1, origin)
                if i.mn == "s_branch": return
        for b, hs in branches:
            walk(labpos[b.ops[0]], hs, 16, 0, b.text)
        self.npad = npad
        return "\n".join(("" if (i.label or i.mn is None) else "    ") + i.text for i in out)


class Ctr:
    def __init__(self, a, name, mx):
        self.a = a; self.name = name; self.q = []; self.mx = mx

    def issue(self, tag=None):
        self.q.append(tag)

    def wait(self, tag):
        if tag not in self.q:
            return
        k = len(self.q) - 1 - max(i for i, t in enumerate(self.q) if t == tag)
        assert k <= self.mx, (self.name, k)
        self.a(f"s_waitcnt {self.name}({k})")
        self.q = self.q[len(self.q) - k:] if k else []

    def drain(self):
        self.a(f"s_waitcnt {self.name}(0)")
        self.q = []


def vr(a, n=1):
    return f"v{a}" if n == 1 else f"v[{a}:{a+n-1}]"


def sr(a, n=1):
    return f"s{a}" if n == 1 else f"s[{a}:{a+n-1}]"
```

```python
import sys, struct, math
from asmlib import *

NAME = "gated_mix__ssm_conv_s5__grouped_kv_mqa__prompt"

class Cfg:
    prof = False
    thr = 40.0
    u_prio = [0, 0]
    y_prio = 0
    hold = 17
    att_prio = 2

def f2u(x):
    return struct.unpack("<I", struct.pack("<f", x))[0]

WS_KVFLAG = 0x1000
WS_EFLAG = 0x2000
WS_HFLAG = 0x4000
WS_OFLAG = 0x6000
WS_KV = 0x10000
WS_E = 0x40000
WS_H = 0x80000
WS_O = 0x500000
WS_PROF = 0x780000
WS_SIZE = 0x800000
E_BYTES = 32 * 4608
XB = 0
RING = 73728
G0 = 94208
G1 = 128384
GSP = 27648
MISC = 162560
ARR = MISC
SSMF = MISC + 64
KMAX = MISC + 96
LOGIT = MISC + 128
GT = MISC + 512
LAND = 115712
QX = 148480
U5B = 157696
WO = 73728
LDS_SIZE = 163840
OOB = 0x40000
GOOB = 0x7ff00000
P_X, P_LRE, P_LIM, P_BRE, P_BIM, P_CRE, P_CIM, P_LDT, P_DSK, P_BX, P_WQ, P_WK, P_WV, P_WO, P_GATE, P_OUT, P_DBG, P_WS = range(16, 52, 2)
RB, CG, WV, NONCE, IDX = 3, 4, 5, 6, 7
S_WS = 52
MAT = 576 * 1152
DPPQ = "quad_perm:[1,0,3,2] row_mask:0xf bank_mask:0xf"
VPROF = 167


def build(cfg):
    a = Asm()

    def srd(d, p, nbytes):
        a(f"s_mov_b32 s{d}, s{p}\ns_mov_b32 s{d+1}, s{p+1}\ns_mov_b32 s{d+2}, {nbytes}\ns_mov_b32 s{d+3}, 0x20000")

    def stamp(k):
        if cfg.prof:
            a(f"s_memrealtime s[100:101]\ns_waitcnt lgkmcnt(0)\nv_writelane_b32 v{VPROF}, s100, {k}")

    def prof_out():
        if cfg.prof:
            a(f"""s_mul_i32 s8, s2, 12
            s_add_u32 s8, s8, s{WV}
            s_lshl_b32 s8, s8, 7
            s_add_u32 s8, s8, {WS_PROF}
            v_lshlrev_b32 v1, 2, v0
            s_mov_b32 exec_hi, 0
            buffer_store_dword v{VPROF}, v1, s[{S_WS}:{S_WS+3}], s8 offen
            s_waitcnt vmcnt(0)""")

    def after_kernarg():
        a("s_waitcnt lgkmcnt(0)")
        a(f"s_load_dword s{NONCE}, s[{P_WS}:{P_WS+1}], 0")
        srd(S_WS, P_WS, WS_SIZE)

    def make_nonce():
        a(f"s_waitcnt lgkmcnt(0)\ns_mul_i32 s{NONCE}, s{NONCE}, 0x9E3779B1\ns_add_u32 s{NONCE}, s{NONCE}, 0x7F4A7C15")

    def lanepart(dst, e, t):
        a(f"""v_lshrrev_b32 v{dst}, 2, v{e}
        v_lshlrev_b32 v{dst}, 5, v{dst}
        v_and_b32 v{t}, 1, v{e}
        v_lshl_add_u32 v{dst}, v{t}, 4, v{dst}
        v_bfe_u32 v{t}, v{e}, 1, 1
        v_add_u32 v{dst}, v{dst}, v{t}""")

    def frag_addr(dst, t1, t2, t3):
        a(f"""v_and_b32 v{t1}, 31, v0
        v_lshrrev_b32 v{t2}, 5, v0
        v_bfe_u32 v{t3}, v0, 1, 3
        v_xor_b32 v{t2}, v{t2}, v{t3}
        v_lshlrev_b32 v{t2}, 4, v{t2}
        v_lshl_add_u32 v{dst}, v{t1}, 7, v{t2}""")
        for k in range(1, 4):
            a(f"v_xor_b32 v{dst+k}, {32*k}, v{dst}")

    def rot3(dst, t):
        a(f"""s_add_u32 s{dst}, s{RB}, s{CG}
        s_mul_i32 s{t}, s{dst}, 43
        s_lshr_b32 s{t}, s{t}, 7
        s_mul_i32 s{t}, s{t}, 3
        s_sub_u32 s{dst}, s{dst}, s{t}""")

    def poll(vdata, n, voff, soff, mask, sleep=8):
        l0, l1 = a.lab("poll"), a.lab("polld")
        ld = "buffer_load_dword" if n == 1 else "buffer_load_dwordx2"
        a(f"""s_mov_b32 s15, 0
        {l0}:
        {ld} {vr(vdata, n)}, v{voff}, s[{S_WS}:{S_WS+3}], {soff} offen sc1
        s_waitcnt vmcnt(0)
        v_cmp_ne_u32 vcc, s{NONCE}, v{vdata}""")
        if mask is not None:
            a(f"s_and_b64 vcc, vcc, s[{mask}:{mask+1}]")
        a(f"""s_cbranch_vccz {l1}
        s_sleep {sleep}
        s_add_u32 s15, s15, 1
        s_cmp_lt_u32 s15, 0x10000
        s_cbranch_scc1 {l0}
        {l1}:""")

    def lds_wait(vtmp, vaddr, need, sleep=2):
        l0, l1 = a.lab("lw"), a.lab("lwd")
        a(f"""s_mov_b32 s15, 0
        {l0}:
        ds_read_b32 v{vtmp}, v{vaddr}
        s_waitcnt lgkmcnt(0)
        v_cmp_gt_u32 vcc, {need}, v{vtmp}
        s_cbranch_vccz {l1}
        s_sleep {sleep}
        s_add_u32 s15, s15, 1
        s_cmp_lt_u32 s15, 0x100000
        s_cbranch_scc1 {l0}
        {l1}:""")

    def flag_store(vtmp, soff):
        a(f"""v_mov_b32 v{vtmp}, s{NONCE}
        v_mov_b32 v{vtmp+1}, 0
        s_mov_b64 exec, 1
        buffer_store_dword v{vtmp}, v{vtmp+1}, s[{S_WS}:{S_WS+3}], {soff} offen sc1
        s_mov_b64 exec, -1""")

    a(f"""s_cmp_ge_u32 s2, 256
    s_cbranch_scc1 L_end
    s_load_dwordx16 s[16:31], s[0:1], 0
    s_load_dwordx16 s[32:47], s[0:1], 64
    s_load_dwordx4 s[48:51], s[0:1], 128
    v_readfirstlane_b32 s{WV}, v0
    v_and_b32 v0, 63, v0
    s_and_b32 s{RB}, s2, 7
    s_lshr_b32 s{IDX}, s2, 3
    s_lshl_b32 s{RB}, s{RB}, 2
    s_and_b32 s8, s{IDX}, 3
    s_add_u32 s{RB}, s{RB}, s8
    s_lshr_b32 s{CG}, s{IDX}, 2
    s_lshr_b32 s{WV}, s{WV}, 6""")
    if cfg.prof:
        a(f"v_mov_b32 v{VPROF}, 0")
        stamp(0)
    a(f"""s_cmp_lt_u32 s{WV}, 8
    s_cbranch_scc1 L_att""")

    SS, HS, PAR, ROT = 80, 81, 82, 83
    S_X, S_WQ, S_WK, S_SP, S_BRE, S_BIM = 56, 60, 64, 68, 72, 76
    AG, AL = 84, 88
    EXW, EXS = 92, 94
    SPG, SPL = 96, 97
    WQG, WQL = 98, 99
    vXA, vBA, vN0, vN1, vWQ = 4, 8, 12, 13, 14
    vXO, vWK, vSP = 158, 159, 160
    C1, C2 = 144, 16
    a(f"""s_sub_u32 s{SS}, s{WV}, 8
    s_lshr_b32 s{HS}, s{SS}, 1
    s_and_b32 s{PAR}, s{SS}, 1
    v_lshrrev_b32 v1, 3, v0          ; e
    v_and_b32 v2, 7, v0              ; slot
    v_lshrrev_b32 v3, 4, v0          ; e>>1
    v_xor_b32 v2, v2, v3
    v_lshlrev_b32 v2, 4, v2
    v_mul_u32_u24 v{vN0}, 1152, v1
    v_add_u32 v{vN0}, v{vN0}, v2
    v_xor_b32 v{vN1}, 64, v{vN0}""")
    lanepart(vXO, 1, 3)
    a(f"""v_mul_u32_u24 v{vXO}, 1152, v{vXO}
    s_lshl_b32 s8, s{PAR}, 6
    v_xor_b32 v2, s8, v2
    v_add_u32 v{vXO}, v{vXO}, v2
    v_mul_u32_u24 v1, 43, v0
    v_lshrrev_b32 v1, 7, v1          ; lane/3
    v_mul_u32_u24 v2, 12, v1
    v_lshlrev_b32 v{vWK}, 4, v0
    v_sub_u32 v{vWK}, v{vWK}, v2     ; 16*lane - 12*(lane/3) = 36*(l/3)+16*(l%3)
    v_mul_u32_u24 v1, 57, v0
    v_lshrrev_b32 v1, 9, v1          ; lane/9
    v_mul_u32_u24 v2, 1008, v1
    v_lshl_add_u32 v{vWQ}, v0, 4, v2 ; 16*lane + 1008*(l/9)
    """)
    a(f"""s_mul_i32 s8, s{CG}, 144
    s_lshl_b32 s9, s{SS}, 5
    s_add_u32 s9, s9, s8
    s_add_u32 s8, s8, 128
    v_and_b32 v1, 30, v0
    v_add_u32 v1, s9, v1
    v_and_b32 v2, 14, v0
    v_add_u32 v2, s8, v2""")
    rot3(ROT, 8)
    a(f"""s_and_b32 s8, s{CG}, 3
    s_mul_i32 s9, s{RB}, 73728
    s_lshl_b32 s10, s8, 1
    s_add_u32 s10, s10, s{PAR}
    s_mul_i32 s11, s10, 2304
    s_add_u32 s11, s11, s9
    s_lshl_b32 s10, s10, 10""")
    for n in range(3):
        a(f"""s_add_u32 s12, s8, {n+1}
        s_and_b32 s12, s12, 3
        s_lshl_b32 s12, s12, 1
        s_add_u32 s12, s12, s{PAR}
        s_lshl_b32 s{AL+n}, s12, 10
        s_mul_i32 s12, s12, 2304
        s_add_u32 s{AG+n}, s12, s9""")
    a(f"""s_cmp_eq_u32 s{HS}, 0
    s_cselect_b32 s{AG+3}, s{AG}, s{AG+2}
    s_cselect_b32 s{AL+3}, s{AL}, s{AL+2}""")
    after_kernarg()
    V = Ctr(a, "vmcnt", 63)
    for i, p in enumerate((P_LRE, P_LIM, P_LDT)):
        a(f"global_load_ushort v{C1+i}, v1, s[{p}:{p+1}]"); V.issue("lam")
        a(f"global_load_ushort v{C2+i}, v2, s[{p}:{p+1}]"); V.issue("lam")
    srd(S_X, P_X, 2048 * 1152)
    a(f"""s_cmp_lt_u32 s{CG}, 4
    s_cselect_b32 s{S_WK}, s{P_WK}, s{P_WV}
    s_cselect_b32 s{S_WK+1}, s{P_WK+1}, s{P_WV+1}
    s_mov_b32 s{S_WK+2}, {576*36}
    s_mov_b32 s{S_WK+3}, 0x20000""")

    def dma(srd_, voff, lbase, limm, gbase, gimm, tag, sc=""):
        a(f"s_add_u32 m0, {lbase}, {limm}\ns_add_u32 s14, {gbase}, {gimm}\nbuffer_load_dwordx4 v{voff}, s[{srd_}:{srd_+3}], s14 offen{sc} lds")
        V.issue(tag)

    a(f"""s_lshl_b32 s12, s{HS}, 7
    s_add_u32 s12, s12, s11
    s_lshl_b32 s13, s{HS}, 13
    s_add_u32 s13, s13, s10""")
    for i in range(4):
        dma(S_X, vXO, "s13", 2 * i * 8192, "s12", 2 * i * 128, "kv")
    dma(S_X, vXO, "s10", 8 * 8192, "s11", 8 * 128, "kv")
    a(f"s_mul_i32 s12, s{SS}, {7*756}\ns_mul_i32 s13, s{SS}, {7*1008}")
    for i in range(7):
        dma(S_WK, vWK, "s13", G1 + 1008 * i, "s12", 756 * i, "kv")
    srd(S_WQ, P_WQ, MAT)
    srd(S_BRE, P_BRE, MAT)
    srd(S_BIM, P_BIM, MAT)
    a(f"""s_cmp_eq_u32 s{SS}, 0
    s_cselect_b32 s{S_SP}, s{P_BRE}, s{P_BIM}
    s_cselect_b32 s{S_SP+1}, s{P_BRE+1}, s{P_BIM+1}
    s_cselect_b64 vcc, -1, 0
    v_cndmask_b32 v{vSP}, v{vN1}, v{vN0}, vcc
    s_mul_i32 s{SPG}, s{CG}, {72*1152}
    s_add_u32 s{SPG}, s{SPG}, {64*1152}
    s_lshl_b32 s{SPL}, s{SS}, 10
    s_min_u32 s{SPL}, s{SPL}, 2048
    v_lshlrev_b32 v3, 4, v0
    s_cmp_lt_u32 s{SS}, 2
    s_cselect_b32 s{S_SP}, s{S_SP}, s{P_GATE}
    s_cselect_b32 s{S_SP+1}, s{S_SP+1}, s{P_GATE+1}
    s_mov_b32 s{S_SP+2}, 1152
    s_cselect_b32 s{S_SP+2}, {MAT}, s{S_SP+2}
    s_mov_b32 s{S_SP+3}, 0x20000
    s_cselect_b32 s{SPG}, s{SPG}, 0
    s_cselect_b64 s[{EXS}:{EXS+1}], -1, 0xff
    s_cselect_b64 vcc, -1, 0
    v_cndmask_b32 v{vSP}, v3, v{vSP}, vcc
    s_cmp_eq_u32 s{SS}, 3
    s_cselect_b64 s[{EXW}:{EXW+1}], 0x7ffffff, -1
    s_mul_i32 s{WQG}, s{SS}, {49*1152}
    s_mul_i32 s8, s{CG}, 144
    s_add_u32 s{WQG}, s{WQG}, s8
    s_mul_i32 s{WQL}, s{SS}, {7*1008}""")

    def grp_of(j):
        a(f"s_add_u32 s8, s{ROT}, {j}\ns_sub_u32 s9, s8, 3\ns_cmp_ge_u32 s8, 3\ns_cselect_b32 s8, s9, s8")

    def xgroup(j):
        grp_of(j)
        a(f"""s_mul_i32 s9, s8, 384
        s_mul_i32 s10, s8, 24576
        s_lshl_b32 s11, s{HS}, 8
        s_add_u32 s11, s11, s9
        s_lshl_b32 s12, s{HS}, 14
        s_add_u32 s12, s12, s10""")
        for n in range(3):
            dma(S_X, vXO, f"s{AL+n}", "s12", f"s{AG+n}", "s11", f"x{j}")
        a("s_add_u32 s11, s9, 128\ns_add_u32 s12, s10, 8192")
        dma(S_X, vXO, f"s{AL+3}", "s12", f"s{AG+3}", "s11", f"x{j}")
        dma(S_X, vXO, f"s{AL+1}", "s12", f"s{AG+1}", "s11", f"x{j}")

    def ggroup(j, lo, hi):
        gs = (G0, G1, G0)[j]
        grp_of(j)
        a(f"""s_mul_i32 s9, s8, {192*1152}
        s_add_u32 s9, s9, s{WQG}
        s_mul_i32 s10, s8, 384
        s_add_u32 s10, s10, s{SPG}""")
        for i in range(lo, hi):
            if i < 7:
                if i == 6: a(f"s_mov_b64 exec, s[{EXW}:{EXW+1}]")
                dma(S_WQ, vWQ, f"s{WQL}", gs + 1008 * i, "s9", 8064 * i, f"g{j}")
                if i == 6: a("s_mov_b64 exec, -1")
            else:
                cc = i - 7
                if cc == 0 or i == lo: a(f"s_mov_b64 exec, s[{EXS}:{EXS+1}]")
                dma(S_SP, vSP, f"s{SPL}", gs + GSP + 2176 * cc, "s10", 128 * cc, f"g{j}")
                if cc == 2 or i == hi - 1: a("s_mov_b64 exec, -1")

    xgroup(0)
    ggroup(0, 0, 3)

    def lam_consts(C, t):
        lr, li, dt, x, y, sg, n = t, t + 1, t + 2, t + 3, t + 4, t + 5, t + 6
        a(f"""v_lshlrev_b32 v{lr}, 16, v{C}
        v_lshlrev_b32 v{li}, 16, v{C+1}
        v_lshlrev_b32 v{dt}, 16, v{C+2}
        v_mul_f32 v{dt}, {f2u(math.log2(math.e))}, v{dt}
        v_exp_f32 v{dt}, v{dt}
        v_lshlrev_b32 v{sg}, 31, v0
        v_cvt_pk_bf16_f32 v{dt}, v{dt}, v{dt}
        v_lshlrev_b32 v{dt}, 16, v{dt}
        v_mul_f32 v{x}, v{dt}, v{lr}
        v_mul_f32 v{y}, v{dt}, v{li}
        v_mul_f32 v{x}, {f2u(math.log2(math.e))}, v{x}
        v_mul_f32 v{y}, {f2u(1/(2*math.pi))}, v{y}
        v_exp_f32 v{x}, v{x}
        v_rndne_f32 v{n}, v{y}
        v_sub_f32 v{y}, v{y}, v{n}
        v_cos_f32 v{C}, v{y}
        v_sin_f32 v{C+1}, v{y}
        v_mul_f32 v{n}, v{lr}, v{lr}
        v_fmac_f32 v{n}, v{li}, v{li}
        v_rcp_f32 v{n}, v{n}
        v_mul_f32 v{C}, v{C}, v{x}
        v_mul_f32 v{C+1}, v{C+1}, v{x}
        v_add_f32 v{x}, -1.0, v{C}
        v_mul_f32 v{y}, v{x}, v{lr}
        v_fmac_f32 v{y}, v{C+1}, v{li}
        v_mul_f32 v{y}, v{y}, v{n}            ; cr
        v_xor_b32 v{C+12}, v{sg}, v{y}
        v_mul_f32 v{y}, v{x}, v{li}
        v_fma_f32 v{y}, -v{C+1}, v{lr}, v{y}
        v_mul_f32 v{C+13}, v{y}, v{n}         ; -ci
        v_xor_b32 v{sg}, 0x80000000, v{sg}
        v_xor_b32 v{C+1}, v{sg}, v{C+1}""")
        def sq(d, s):
            a(f"""v_mul_f32 v{x}, v{s+1}, v{s+1}
            v_add_f32 v{y}, v{s}, v{s}
            v_fma_f32 v{d}, v{s}, v{s}, -v{x}
            v_mul_f32 v{d+1}, v{y}, v{s+1}""")
        sq(C + 2, C)
        for _ in range(3): sq(C + 2, C + 2)
        sq(C + 4, C + 2); sq(C + 6, C + 4)
        sq(C + 8, C + 6); sq(C + 8, C + 8); sq(C + 8, C + 8)
        sq(C + 10, C + 8)
    V.wait("lam")
    lam_consts(C1, 32)
    lskip = a.lab("nolam2")
    a(f"s_cmp_lg_u32 s{SS}, 3\ns_cbranch_scc1 {lskip}")
    lam_consts(C2, 32)
    a(f"{lskip}:")
    make_nonce()
    V.wait("kv")
    stamp(1)
    a("s_barrier")
    ggroup(0, 3, 10)
    xgroup(1)
    V.wait("g0")
    stamp(2)
    a("s_barrier")
    ggroup(1, 0, 10)
    a("s_barrier")
    xgroup(2)
    ggroup(2, 0, 3)
    V.wait("g1")
    stamp(3)
    a("s_barrier")
    ggroup(2, 3, 10)
    frag_addr(vXA, 1, 2, 3)
    a(f"""v_and_b32 v1, 1, v0              ; part
    v_bfe_u32 v2, v0, 1, 3           ; e
    v_bfe_u32 v3, v0, 4, 1           ; j/16
    v_lshl_add_u32 v3, v1, 1, v3     ; piece
    v_lshlrev_b32 v3, 10, v3
    v_lshl_add_u32 v3, v2, 7, v3
    v_lshrrev_b32 v2, 1, v2
    v_lshl_or_b32 v2, v1, 2, v2      ; swizzle
    v_lshrrev_b32 v1, 5, v0
    v_xor_b32 v2, v2, v1
    v_lshl_add_u32 v3, v2, 4, v3
    s_lshl_b32 s8, s{SS}, 13
    s_add_u32 s8, s8, {LAND}
    v_add_u32 v{vBA}, s8, v3""")
    for k in range(1, 4):
        a(f"v_xor_b32 v{vBA+k}, {32*k}, v{vBA}")
    a(f"""s_and_b32 s8, s{IDX}, 15
    s_lshl_b32 s8, s8, 4
    s_lshl_b32 s9, s{SS}, 6
    s_add_u32 s8, s8, s9
    v_add_u32 v1, s8, v0
    v_and_b32 v1, 255, v1
    v_lshlrev_b32 v1, 3, v1
    s_mov_b32 s13, {WS_KVFLAG}""")
    V.wait("g2")
    stamp(4)
    a("s_barrier")
    poll(2, 2, 1, "s13", None)
    stamp(5)
    lk = a.lab("nokv")
    a(f"s_cmp_lg_u32 s{SS}, 0\ns_cbranch_scc1 {lk}\nv_lshlrev_b32 v1, 4, v0")
    for st in range(2):
        a(f"s_add_u32 s8, s{IDX}, {st}\ns_and_b32 s8, s8, 15\ns_mul_i32 s8, s8, 10240")
        for i in range(10):
            a(f"s_mov_b32 m0, {RING + st*10240 + i*1024}\ns_add_u32 s14, s8, {WS_KV + i*1024}\nbuffer_load_dwordx4 v1, s[{S_WS}:{S_WS+3}], s14 offen sc1 lds")
    a(f"{lk}:")
    for r in (8, 4, 2, 1):
        a(f"v_max_f32_dpp v3, v3, v3 row_ror:{r} row_mask:0xf bank_mask:0xf")
    a(f"""v_mov_b32 v2, v3
    v_permlane16_swap_b32 v2, v3
    v_max_f32 v3, v2, v3
    v_mov_b32 v2, v3
    v_permlane32_swap_b32 v2, v3
    v_max_f32 v3, v2, v3
    s_lshl_b32 s8, s{SS}, 2
    s_add_u32 s8, s8, {KMAX}
    v_mov_b32 v2, s8
    s_mov_b64 exec, 1
    ds_write_b32 v2, v3
    s_mov_b64 exec, -1
    s_waitcnt vmcnt(0) lgkmcnt(0)""")
    V.q = []
    stamp(6)
    a("s_barrier")
    UA, U5, BF, XF = 32, 64, 96, 128
    BG, LB, CH = 84, 85, 86
    a(f"""s_setprio 3
    s_mul_i32 s{BG}, s{CG}, {72*1152}
    s_mul_i32 s8, s{SS}, {16*1152}
    s_add_u32 s{BG}, s{BG}, s8
    s_lshl_b32 s{LB}, s{SS}, 13
    s_add_u32 s{LB}, s{LB}, {LAND}
    s_and_b32 s{CH}, s{RB}, 3
    s_lshl_b32 s{CH}, s{CH}, 1
    s_mov_b32 s87, s{CH}""")
    L = Ctr(a, "lgkmcnt", 15)

    def bdma(n):
        a(f"s_lshl_b32 s8, s87, 7\ns_add_u32 s8, s8, s{BG}")
        for pc in range(4):
            dma(S_BRE if pc < 2 else S_BIM, vN0 if pc < 2 else vN1, f"s{LB}", (n % 2) * 4096 + pc * 1024, "s8", (pc % 2) * 9216, f"b{n}")
        a("s_add_u32 s87, s87, 1\ns_cmp_eq_u32 s87, 9\ns_cselect_b32 s87, 0, s87")
    bdma(0); bdma(1)
    lg = a.lab("nogate")
    a(f"""s_cmp_lg_u32 s{SS}, 0
    s_cbranch_scc1 {lg}
    v_and_b32 v1, 15, v0
    v_bfe_u32 v2, v0, 4, 1
    v_lshl_add_u32 v1, v1, 1, v2
    v_and_b32 v2, 32, v0
    v_add_u32 v1, v1, v2
    v_lshlrev_b32 v1, 2, v1
    v_add_u32 v1, {LOGIT}, v1
    ds_read_b32 v1, v1
    s_waitcnt lgkmcnt(0)
    v_cvt_pk_bf16_f32 v1, v1, v1
    v_lshlrev_b32 v1, 16, v1
    v_mul_f32 v1, {f2u(-math.log2(math.e))}, v1
    v_exp_f32 v1, v1
    v_add_f32 v1, 1.0, v1
    v_rcp_f32 v1, v1
    v_cvt_pk_bf16_f32 v1, v1, v1
    v_lshlrev_b32 v2, 16, v1
    v_sub_f32 v3, 1.0, v2
    v_cvt_pk_bf16_f32 v3, v3, v3
    v_lshlrev_b32 v3, 16, v3
    v_lshlrev_b32 v1, 3, v0
    v_add_u32 v1, {GT}, v1
    ds_write_b64 v1, v[2:3]
    v_mov_b32 v1, {ARR+32}
    v_mov_b32 v2, 255
    s_waitcnt lgkmcnt(0)
    s_mov_b64 exec, 1
    ds_write_b32 v1, v2
    s_mov_b64 exec, -1
    {lg}:
    s_lshl_b32 s8, s{CH}, 13""")
    for k in range(4):
        a(f"v_add_u32 v{vXA+k}, s8, v{vXA+k}")

    def bread(n):
        V.wait(f"b{n}")
        for k in range(4):
            a(f"ds_read_b128 {vr(BF + 16*(n%2) + 4*k, 4)}, v{vBA+k} offset:{(n%2)*4096}"); L.issue(f"bf{n}")
        L.wait(f"bf{n}")
        if n + 2 < 9: bdma(n + 2)
    bread(0)

    def xread(i):
        st, m = divmod(i, 2)
        if st >= 36: return
        if st % 4 == 0 and m == 0 and st > 0:
            a(f"""s_add_u32 s{CH}, s{CH}, 1
            s_cmp_eq_u32 s{CH}, 9
            s_cselect_b32 s{CH}, 0, s{CH}
            s_mov_b32 s8, 8192
            s_cselect_b32 s8, {(-65536) & 0xffffffff}, s8""")
            for k in range(4):
                a(f"v_add_u32 v{vXA+k}, s8, v{vXA+k}")
        a(f"ds_read_b128 {vr(XF + 4*(i%4), 4)}, v{vXA + st%4} offset:{m*4096}"); L.issue(f"x{i}")
    for i in range(3): xread(i)
    npat = len(cfg.u_prio)
    curp = 3
    for n in range(9):
        if n + 1 < 9:
            if curp != 3: a("s_setprio 3"); curp = 3
            bread(n + 1)
        for k in range(4):
            for m in range(2):
                i = (4 * n + k) * 2 + m
                xread(i + 3)
                L.wait(f"x{i}")
                p = cfg.u_prio[i % npat]
                if p != curp: a(f"s_setprio {p}"); curp = p
                c = "0" if (n == 0 and k == 0) else vr(UA + 16 * m, 16)
                a(f"v_mfma_f32_32x32x16_bf16 {vr(UA+16*m,16)}, {vr(XF+4*(i%4),4)}, {vr(BF+16*(n%2)+4*k,4)}, {c}")
    a("s_setprio 3")
    stamp(7)
    vSFW, vSFR = 158, 159
    a(f"""s_lshl_b32 s8, s{SS}, 2
    s_add_u32 s8, s8, {SSMF}
    v_mov_b32 v1, {OOB}
    v_mov_b32 v2, s8
    v_cmp_eq_u32 vcc, 0, v0
    v_cndmask_b32 v{vSFW}, v1, v2, vcc
    v_and_b32 v{vSFR}, 3, v0
    v_lshlrev_b32 v{vSFR}, 2, v{vSFR}
    v_add_u32 v{vSFR}, {SSMF}, v{vSFR}
    v_mov_b32 v1, 1
    ds_write_b32 v{vSFW}, v1""")

    S_E = 56
    a(f"""s_add_u32 s{S_E}, s{P_WS}, {WS_E}
    s_addc_u32 s{S_E+1}, s{P_WS+1}, 0
    s_mov_b32 s{S_E+2}, {E_BYTES}
    s_mov_b32 s{S_E+3}, 0x20000""")

    def cmad(d, P, z, w):
        a(f"v_fma_f32 v{d}, v{P}, v{z}, v{w}\nv_fmac_f32_dpp v{d}, v{z}, v{P+1} {DPPQ}")

    def horner(U, nsteps, P, T):
        cur = U
        for k in range(1, nsteps):
            nx = T + 2 * (k % 2)
            a(f"""v_pk_fma_f32 {vr(nx,2)}, {vr(P,2)}, {vr(cur,2)}, {vr(U+2*k,2)} op_sel_hi:[0,1,1]
            v_fmac_f32_dpp v{nx}, v{cur}, v{P+1} {DPPQ}
            v_fmac_f32_dpp v{nx+1}, v{cur+1}, v{P+1} {DPPQ}""")
            cur = nx
        return cur

    def combine(e, Pa, Pb, lo, hi, out):
        cmad(lo, Pa, e, e + 1)
        a(f"v_mov_b32 v{hi}, v{lo}\nv_permlane32_swap_b32 v{lo}, v{hi}")
        cmad(out, Pb, lo, hi)

    K1, K2 = 96, 100
    T = 104
    def pass1(U, C, K, extra):
        e = horner(U, 16, C, T)
        a(f"v_mov_b32 v{K}, v{e}")
        combine(e, C + 2, C + 4, K + 1, T + 4, T + 5)
        a(f"s_mul_i32 s8, s{CG}, 576")
        if extra:
            a(f"s_add_u32 s8, s8, 512\nv_and_b32 v1, 15, v0\ns_mov_b64 vcc, 0xffff")
        else:
            a(f"s_lshl_b32 s9, s{SS}, 7\ns_add_u32 s8, s8, s9\nv_and_b32 v1, 31, v0\ns_mov_b32 vcc_lo, -1\ns_mov_b32 vcc_hi, 0")
        a(f"""v_lshl_add_u32 v{K+2}, v1, 2, s8
        v_mov_b32 v1, {GOOB}
        v_cndmask_b32 v1, v1, v{K+2}, vcc
        s_sub_u32 s9, 31, s{RB}
        s_mul_i32 s9, s9, 4608
        buffer_store_dword v{T+5}, v1, s[{S_E}:{S_E+3}], s9 offen sc1""")
    pass1(UA, C1, K1, False)
    l5 = a.lab("no5a")
    a(f"""s_cmp_lg_u32 s{SS}, 3
    s_cbranch_scc1 {l5}
    v_and_b32 v1, 15, v0
    v_mul_u32_u24 v1, 272, v1
    v_lshrrev_b32 v2, 5, v0
    v_lshl_add_u32 v1, v2, 7, v1
    v_add_u32 v1, {U5B}, v1""")
    for k in range(8):
        a(f"ds_read_b128 {vr(U5+4*k,4)}, v1 offset:{16*k}")
    a("s_waitcnt lgkmcnt(0)")
    pass1(U5, C2, K2, True)
    a(f"{l5}:")
    a(f"""s_lshl_b32 s12, s{CG}, 2
    s_add_u32 s12, s12, s{SS}
    s_lshl_b32 s12, s12, 7
    s_add_u32 s12, s12, {WS_EFLAG}
    s_lshl_b32 s13, s{RB}, 2
    s_add_u32 s13, s13, s12
    s_waitcnt vmcnt(0)""")
    flag_store(2, "s13")
    stamp(8)
    le = a.lab("noep")
    a(f"""s_or_b32 s8, s2, s{SS}
    s_cmp_lg_u32 s8, 0
    s_cbranch_scc1 {le}
    s_mov_b64 exec, 1
    buffer_store_dword v2, v3, s[{S_WS}:{S_WS+3}], 0 offen
    s_mov_b64 exec, -1
    {le}:""")
    S_C, S_WO = 60, 64
    CGB, CLB, CC0 = 84, 85, 86
    a(f"""s_cmp_eq_u32 s{HS}, 0
    s_cselect_b32 s{S_C}, s{P_CRE}, s{P_CIM}
    s_cselect_b32 s{S_C+1}, s{P_CRE+1}, s{P_CIM+1}
    s_mov_b32 s{S_C+2}, {MAT}
    s_mov_b32 s{S_C+3}, 0x20000
    s_mul_i32 s{CGB}, s{CG}, {72*1152}
    s_mul_i32 s{CLB}, s{SS}, 18432""")
    srd(S_WO, P_WO, MAT)
    a(f"s_mov_b32 s{CC0}, 4\ns_mul_i32 s9, s{PAR}, 5")
    for i in range(4):
        a(f"s_add_u32 s8, s{RB}, {i}\ns_and_b32 s8, s8, 3\ns_add_u32 s{CC0+1+i}, s8, s9")
    lds_wait(1, vSFR, 1)

    def cdma(n):
        a(f"s_lshl_b32 s8, s{CC0+n}, 7\ns_add_u32 s8, s8, s{CGB}")
        for j in range(9):
            dma(S_C, vN0 if j % 2 == 0 else vN1, f"s{CLB}", (n % 2) * 9216 + j * 1024, "s8", j * 9216, f"c{n}")
    V.q = []
    cdma(0); cdma(1)
    a(f"""v_lshlrev_b32 v1, 2, v0
    s_bfm_b64 s[10:11], s{RB}, 0
    s_setprio 0
    s_sleep 16""")
    poll(2, 1, 1, "s12", 10)
    a("s_setprio 3")
    V.q = []
    stamp(9)
    EB = 112
    def eload(K, B):
        a(f"""v_lshrrev_b32 v1, 5, v0
        v_mul_u32_u24 v1, {16*4608}, v1
        s_sub_u32 s8, 48, s{RB}
        s_mul_i32 s8, s8, 4608
        v_sub_u32 v1, s8, v1
        v_add_u32 v1, v1, v{K+2}""")
        for n in range(16):
            reg = B + 2 * (n % 8) + n // 8
            a(f"s_mov_b32 s8, {(15-n)*4608}\nbuffer_load_dword v{reg}, v1, s[{S_E}:{S_E+3}], s8 offen sc1")

    def pass2(U, C, K, B, extra):
        e = horner(B, 8, C + 6, T)
        combine(e, C + 8, C + 10, T + 4, T + 5, T + 6)
        cmad(T + 4, C + 4, T + 6, K + 1)
        a(f"s_mov_b32 vcc_lo, -1\ns_mov_b32 vcc_hi, 0\nv_cndmask_b32 v{T}, v{T+4}, v{T+6}, vcc")
        cmad(T + 1, C + 2, T, K)
        cur = T
        for k in range(16):
            nx = U + 2 * k
            a(f"""v_pk_fma_f32 {vr(nx,2)}, {vr(C,2)}, {vr(cur,2)}, {vr(nx,2)} op_sel_hi:[0,1,1]
            v_fmac_f32_dpp v{nx}, v{cur}, v{C+1} {DPPQ}
            v_fmac_f32_dpp v{nx+1}, v{cur+1}, v{C+1} {DPPQ}""")
            cur = nx
        for k in range(16):
            t = T + 2 * (k % 2)
            a(f"""v_pk_mul_f32 {vr(t,2)}, {vr(C+12,2)}, {vr(U+2*k,2)} op_sel_hi:[0,1]
            v_fmac_f32_dpp v{t}, v{U+2*k}, v{C+13} {DPPQ}
            v_fmac_f32_dpp v{t+1}, v{U+2*k+1}, v{C+13} {DPPQ}""")
            if k % 2:
                a(f"v_cvt_pk_bf16_f32 v{B+k//2}, v{T}, v{T+2}\nv_cvt_pk_bf16_f32 v{B+8+k//2}, v{T+1}, v{T+3}")
        a(f"""s_lshl_b32 s8, s{SS}, 13
        s_add_u32 s8, s8, {LAND}
        v_and_b32 v1, 31, v0
        v_mul_u32_u24 v1, 144, v1
        v_lshrrev_b32 v2, 5, v0
        v_lshl_add_u32 v1, v2, 6, v1
        v_add_u32 v1, s8, v1""")
        for k in range(4):
            a(f"ds_write_b128 v1, {vr(B+4*k,4)} offset:{16*k}")
        a(f"""v_bfe_u32 v1, v0, 2, 2           ; r
        v_mul_u32_u24 v1, 288, v1
        v_lshrrev_b32 v2, 4, v0
        v_lshl_add_u32 v1, v2, 5, v1
        v_and_b32 v2, 3, v0
        v_lshl_add_u32 v1, v2, 3, v1
        v_add_u32 v1, s8, v1
        v_lshlrev_b32 v2, 4, v0
        s_mul_i32 s8, s{RB}, 147456
        s_mul_i32 s9, s{CG}, 9216
        s_add_u32 s8, s8, s9""")
        if extra:
            a(f"s_add_u32 s8, s8, {WS_H + 8192}")
        else:
            a(f"s_lshl_b32 s9, s{SS}, 11\ns_add_u32 s8, s8, s9\ns_add_u32 s8, s8, {WS_H}")
        a("s_add_u32 s9, s8, 73728\ns_waitcnt lgkmcnt(0)")
        ng = 1 if extra else 2
        for g2 in range(ng):
            for part in range(2):
                d = U + 8 * g2 + 4 * part
                off = g2 * 16 * 144 + part * 144
                a(f"ds_read_b64_tr_b16 {vr(d,2)}, v1 offset:{off}\nds_read_b64_tr_b16 {vr(d+2,2)}, v1 offset:{off+8*144}")
        a("s_waitcnt lgkmcnt(0)")
        for g2 in range(ng):
            for part in range(2):
                d = U + 8 * g2 + 4 * part
                a(f"buffer_store_dwordx4 {vr(d,4)}, v2, s[{S_WS}:{S_WS+3}], s{8+part} offen offset:{g2*1024} sc1")
    eload(K1, EB)
    l5 = a.lab("no5b")
    a(f"s_cmp_lg_u32 s{SS}, 3\ns_cbranch_scc1 {l5}")
    eload(K2, EB + 16)
    a(f"{l5}:\ns_waitcnt vmcnt(0)")
    pass2(UA, C1, K1, EB, False)
    l5 = a.lab("no5c")
    a(f"s_cmp_lg_u32 s{SS}, 3\ns_cbranch_scc1 {l5}")
    pass2(U5, C2, K2, EB + 16, True)
    a(f"{l5}:")
    a(f"""v_mov_b32 v1, 2
    ds_write_b32 v{vSFW}, v1
    s_lshl_b32 s12, s{RB}, 7
    s_add_u32 s12, s12, {WS_HFLAG}
    s_lshl_b32 s13, s{CG}, 2
    s_add_u32 s13, s13, s{SS}
    s_lshl_b32 s13, s13, 2
    s_add_u32 s13, s13, s12
    s_waitcnt vmcnt(0)""")
    flag_store(2, "s13")
    stamp(10)
    lds_wait(1, vSFR, 2)
    a(f"""s_mul_i32 s8, s{SS}, {72*1152}
    s_mul_i32 s9, s{CG}, 144
    s_add_u32 s8, s8, s9
    s_mul_i32 s9, s{SS}, {72*144}
    s_mov_b32 exec_hi, 0x3fffff""")
    for i in range(12):
        dma(S_WO, vWQ, "s9", WO + (288 + 6 * i) * 144, "s8", (288 + 6 * i) * 1152, "wo")
    a("s_mov_b32 exec_hi, -1")
    YA, HF, CF = 16, 88, 152
    vCA, vCR, vH, vARR = 4, 8, 15, 164
    frag_addr(vCA, 1, 2, 3)
    a(f"""v_and_b32 v1, 7, v0              ; e
    v_lshrrev_b32 v2, 1, v1
    v_lshrrev_b32 v3, 5, v0
    v_xor_b32 v2, v2, v3
    v_lshlrev_b32 v2, 4, v2
    v_lshl_add_u32 v1, v1, 7, v2
    v_add_u32 v1, 8192, v1
    v_lshrrev_b32 v2, 3, v0
    v_lshrrev_b32 v3, 4, v0
    v_xor_b32 v2, v2, v3
    v_and_b32 v2, 1, v2
    v_lshlrev_b32 v2, 18, v2
    v_add3_u32 v{vCR}, v1, v2, s{CLB}""")
    for k in range(1, 4):
        a(f"v_xor_b32 v{vCR+k}, {32*k}, v{vCR}")
    for k in range(4):
        a(f"v_add_u32 v{vCA+k}, s{CLB}, v{vCA+k}")
    HB = 91
    a(f"""v_and_b32 v1, 31, v0
    v_lshrrev_b32 v2, 5, v0
    v_lshlrev_b32 v2, 10, v2
    v_lshl_add_u32 v{vH}, v1, 4, v2
    v_and_b32 v{vARR}, 7, v0
    v_lshlrev_b32 v{vARR}, 2, v{vARR}
    v_add_u32 v{vARR}, {ARR}, v{vARR}
    s_mul_i32 s{HB}, s{RB}, 147456
    s_mul_i32 s8, s{HS}, 73728
    s_add_u32 s{HB}, s{HB}, s8
    s_add_u32 s{HB}, s{HB}, {WS_H}
    v_lshlrev_b32 v1, 2, v0
    s_mov_b32 s10, -1
    s_mov_b32 s11, 0
    s_setprio 0
    s_sleep 16""")
    poll(2, 1, 1, "s12", 10)
    a("s_setprio 3")
    V.q = []
    stamp(11)
    a(f"s_lshl_b32 s92, s{PAR}, 6")
    for k in range(2):
        a(f"v_xor_b32 v{vCA+k}, s92, v{vCA+k}\nv_xor_b32 v{vCR+k}, s92, v{vCR+k}")

    def hload(n):
        a(f"s_lshl_b32 s8, s{CC0+n}, 13\ns_add_u32 s8, s8, s{HB}")
        if n == 0:
            a(f"s_lshl_b32 s9, s{PAR}, 12\ns_add_u32 s8, s8, s9")
        ns = 2 if n == 0 else 4
        for k in range(ns):
            if k == 2: a("s_add_u32 s8, s8, 4096")
            for rh in range(2):
                a(f"buffer_load_dwordx4 {vr(HF + 32*(n%2) + 8*k + 4*rh, 4)}, v{vH}, s[{S_WS}:{S_WS+3}], s8 offen offset:{(k%2)*2048 + rh*512} sc1")
                V.issue(f"h{n}")
    hload(0); hload(1)
    steps = [(n, k) for n in range(5) for k in range(2 if n == 0 else 4)]

    def cread(si, which):
        if si >= len(steps): return
        n, k = steps[si]
        if which < 2:
            a(f"ds_read_b128 {vr(CF+4*which,4)}, v{vCA+k} offset:{(n%2)*9216 + which*4096}")
        else:
            a(f"ds_read_b128 {vr(CF+8,4)}, v{vCR+k} offset:{(n%2)*9216}")
        L.issue(f"c{si}_{which}")
    L.q = []
    for w_ in range(3): cread(0, w_)
    for si, (n, k) in enumerate(steps):
        last_in_chunk = (si + 1 == len(steps)) or steps[si + 1][0] != n
        if k == 0:
            if n == 3:
                a("s_setprio 0")
                lds_wait(1, vARR, cfg.hold, sleep=4)
                L.q = []
                stamp(12)
            V.wait(f"h{n}")
            a(f"s_setprio {cfg.y_prio if n < 3 else 3}")
        if last_in_chunk and n + 1 < 5:
            V.wait(f"c{n+1}")
            if n == 0:
                for kk in range(2):
                    a(f"v_xor_b32 v{vCA+kk}, s92, v{vCA+kk}\nv_xor_b32 v{vCR+kk}, s92, v{vCR+kk}")
        for which in range(3):
            L.wait(f"c{si}_{which}")
            for rh in range(2):
                hb = vr(HF + 32 * (n % 2) + 8 * k + 4 * rh, 4)
                if which < 2:
                    d = vr(YA + 36 * rh + 16 * which, 16)
                    a(f"v_mfma_f32_32x32x16_bf16 {d}, {vr(CF+4*which,4)}, {hb}, {'0' if si == 0 else d}")
                else:
                    d = vr(YA + 36 * rh + 32, 4)
                    a(f"v_mfma_f32_16x16x32_bf16 {d}, {vr(CF+8,4)}, {hb}, {'0' if si == 0 else d}")
            cread(si + 1, which)
        if last_in_chunk and n + 2 < 5:
            a("s_setprio 3")
            cdma(n + 2); hload(n + 2)
    stamp(13)
    vD1, vD2 = 4, 5
    a(f"""v_and_b32 v1, 31, v0
    v_mul_u32_u24 v1, 288, v1
    v_lshrrev_b32 v2, 5, v0
    v_lshl_add_u32 v{vD1}, v2, 4, v1
    v_and_b32 v1, 15, v0
    v_lshl_add_u32 v1, v2, 4, v1
    v_mul_u32_u24 v1, 288, v1
    v_bfe_u32 v2, v0, 4, 1
    v_lshl_add_u32 v{vD2}, v2, 4, v1
    v_add_u32 v6, s{CLB}, v{vD1}
    v_add_u32 v7, s{CLB}, v{vD2}""")
    def dump(acc, v1_, v2_, imm):
        for nt in range(2):
            for q in range(4):
                a(f"ds_write_b128 v{v1_}, {vr(acc+16*nt+4*q,4)} offset:{imm + nt*128 + q*32}")
        a(f"ds_write_b128 v{v2_}, {vr(acc+32,4)} offset:{imm + 256}")
    for rh in range(2):
        dump(YA + 36 * rh, 6, 7, rh * 9216)
    OA, WF, OF = 16, 52, 88
    vWA, vWR, vWB, vWS = 8, 9, 10, 11
    a(f"""v_bfe_u32 v1, v0, 2, 2           ; r
    v_lshrrev_b32 v2, 5, v0          ; G/2
    v_lshl_add_u32 v3, v2, 3, v1
    v_mul_u32_u24 v{vWA}, 144, v3
    v_lshrrev_b32 v3, 1, v1
    v_lshl_add_u32 v3, v2, 2, v3
    v_mul_u32_u24 v3, 18, v3
    v_and_b32 v1, 1, v1
    v_add3_u32 v3, v3, v1, 16
    v_mul_u32_u24 v{vWB}, 144, v3
    v_and_b32 v1, 3, v0              ; c4
    v_bfe_u32 v2, v0, 4, 1           ; G&1
    v_lshl_add_u32 v3, v2, 2, v1
    v_lshlrev_b32 v3, 3, v3
    v_lshrrev_b32 v165, 1, v1
    v_xor_b32 v165, v165, v2
    v_lshlrev_b32 v165, 18, v165
    v_and_b32 v1, 1, v1
    v_lshl_add_u32 v165, v1, 3, v165
    v_add_u32 v165, 128, v165
    s_mul_i32 s8, s{HS}, {18*2592}
    s_add_u32 s8, s8, {WO}
    s_mov_b32 s9, {WO}
    v_add3_u32 v{vWR}, v{vWA}, v165, s8
    v_add3_u32 v{vWA}, v{vWA}, v3, s8
    v_add3_u32 v{vWS}, v{vWB}, v165, s9
    v_add3_u32 v{vWB}, v{vWB}, v3, s9
    s_lshl_b32 s12, s{RB}, 1
    s_add_u32 s12, s12, s{PAR}
    s_lshl_b32 s12, s12, 7
    s_add_u32 s12, s12, {WS_OFLAG}
    v_lshlrev_b32 v1, 2, v0
    s_waitcnt vmcnt(0) lgkmcnt(0)""")
    stamp(14)
    a("s_barrier")
    poll(2, 1, 1, "s12", 10, sleep=4)
    stamp(15)
    V.q = []; L.q = []
    a(f"""s_mul_i32 s8, s{RB}, 73728
    s_mul_i32 s9, s{HS}, {18*2048}
    s_add_u32 s8, s8, s9
    s_lshl_b32 s9, s{PAR}, 9
    s_add_u32 s8, s8, s9
    s_add_u32 s8, s8, {WS_O}""")
    for st in range(18):
        if st and st % 2 == 0: a("s_add_u32 s8, s8, 4096")
        a(f"buffer_load_dwordx4 {vr(OF+4*st,4)}, v{vH}, s[{S_WS}:{S_WS+3}], s8 offen offset:{(st%2)*2048} sc1"); V.issue(f"o{st}")

    def ogemm(kh):
        L.q = []
        Vq = list(V.q)
        def wread(st):
            if st >= 18: return
            b = WF + 12 * (st % 2)
            g = 18 * kh + st
            if g < 32:
                va, vr_, off, sec = vWA, vWR, st * 2592, 576
            else:
                va, vr_, off, sec = vWB, vWS, (g - 32) * 8 * 2592, 2 * 2592
                if g == 35:
                    a(f"v_add_u32 v{vWB}, {off}, v{vWB}\nv_add_u32 v{vWS}, {off}, v{vWS}")
                    off = 0
            for nt in range(2):
                a(f"ds_read_b64_tr_b16 {vr(b+4*nt,2)}, v{va} offset:{off+64*nt}\nds_read_b64_tr_b16 {vr(b+4*nt+2,2)}, v{va} offset:{off+64*nt+sec}")
                L.issue(); L.issue(f"w{st}_{nt}")
            a(f"ds_read_b64_tr_b16 {vr(b+8,2)}, v{vr_} offset:{off}\nds_read_b64_tr_b16 {vr(b+10,2)}, v{vr_} offset:{off+sec}")
            L.issue(); L.issue(f"w{st}_2")
        wread(0)
        for st in range(18):
            wread(st + 1)
            V.wait(f"o{st}")
            b = WF + 12 * (st % 2)
            L.wait(f"w{st}_2")
            for nt in range(2):
                d = vr(OA + 16 * nt, 16)
                a(f"v_mfma_f32_32x32x16_bf16 {d}, {vr(b+4*nt,4)}, {vr(OF+4*st,4)}, {'0' if st == 0 else d}")
            d = vr(OA + 32, 4)
            a(f"v_mfma_f32_16x16x32_bf16 {d}, {vr(b+8,4)}, {vr(OF+4*st,4)}, {'0' if st == 0 else d}")
        V.q = Vq
    lo1, lo2 = a.lab("og1"), a.lab("og2")
    a(f"s_cmp_lg_u32 s{HS}, 0\ns_cbranch_scc1 {lo1}")
    ogemm(0)
    a(f"s_branch {lo2}\n{lo1}:")
    ogemm(1)
    a(f"{lo2}:")
    a(f"""s_mul_i32 s8, s{HS}, 18432
    s_mul_i32 s9, s{PAR}, 9216
    s_add_u32 s8, s8, s9
    v_add_u32 v6, s8, v{vD1}
    v_add_u32 v7, s8, v{vD2}
    s_nop 7""")
    stamp(16)
    a("s_barrier")
    dump(OA, 6, 7, 0)
    a("s_waitcnt lgkmcnt(0)")
    a("s_barrier")
    stamp(17)
    prof_out()
    a("s_endpgm")

    a("L_att:")
    vXA = 4
    ROT, JJ, MM = 80, 81, 82
    ACC, AF, BFR = 16, 48, 80
    frag_addr(vXA, 1, 2, 3)
    rot3(ROT, 8)
    a(f"""s_and_b32 s{MM}, s{WV}, 1
    v_mov_b32 v1, {MISC}
    v_lshl_add_u32 v1, v0, 2, v1
    v_mov_b32 v2, 0
    s_mov_b64 exec, 0xffffff
    ds_write_b32 v1, v2
    s_mov_b64 exec, -1""")
    after_kernarg()
    L = Ctr(a, "lgkmcnt", 15)
    QC = math.log2(math.e) / math.sqrt(18.0)

    def job_loop(kind):
        vW = 8
        vX = 12
        a(f"""v_bfe_u32 v1, v0, 2, 2
        v_lshrrev_b32 v2, 5, v0""")
        if kind in "qt":
            a(f"""v_lshl_add_u32 v1, v2, 3, v1
            v_mul_u32_u24 v{vW}, 144, v1
            v_and_b32 v1, 3, v0
            v_bfe_u32 v2, v0, 4, 1""")
            if kind == "q":
                a(f"""v_lshl_add_u32 v1, v2, 2, v1
                v_lshl_add_u32 v{vW}, v1, 3, v{vW}
                s_lshr_b32 s8, s{WV}, 1
                s_lshl_b32 s8, s8, 6
                s_add_u32 s8, s8, {G0}
                v_add_u32 v{vW}, s8, v{vW}""")
            else:
                a(f"""v_lshrrev_b32 v3, 1, v1
                v_xor_b32 v3, v3, v2
                v_lshlrev_b32 v3, 18, v3
                v_and_b32 v1, 1, v1
                v_lshl_add_u32 v3, v1, 3, v3
                v_add_u32 v3, {G0+128}, v3
                v_add_u32 v{vW}, v3, v{vW}""")
        else:
            a(f"""v_and_b32 v1, 1, v0
            v_bfe_u32 v3, v0, 1, 3
            v_lshlrev_b32 v{vW}, 10, v1
            v_lshl_add_u32 v{vW}, v3, 7, v{vW}
            v_lshrrev_b32 v3, 1, v3
            v_lshl_or_b32 v3, v1, 2, v3
            v_xor_b32 v3, v3, v2
            v_lshl_add_u32 v{vW}, v3, 4, v{vW}
            v_and_b32 v1, 31, v0
            v_add_u32 v3, 2048, v{vW}
            v_cmp_eq_u32 vcc, 16, v1
            v_cndmask_b32 v{vW}, v{vW}, v3, vcc
            v_mov_b32 v3, {OOB}
            v_cmp_lt_u32 vcc, 16, v1
            v_cndmask_b32 v{vW}, v{vW}, v3, vcc
            v_add_u32 v{vW}, {G0+GSP}, v{vW}""")
            for k in range(1, 4):
                a(f"v_xor_b32 v{vW+k}, {32*k}, v{vW}")
        nacc = 16 if kind != "t" else 8
        for r in range(nacc):
            a(f"v_mov_b32 v{ACC+r}, 0")
        make_nonce()
        a(f"s_mov_b32 s{JJ}, 0\ns_barrier")
        lp, ls = a.lab("job"), a.lab("jobs")
        a(f"""{lp}:
        s_mul_i32 s8, s{ROT}, 24576""")
        if kind != "t":
            a(f"s_lshl_b32 s9, s{MM}, 12\ns_add_u32 s8, s8, s9")
        for k in range(4):
            a(f"v_add_u32 v{vX+k}, s8, v{vXA+k}")
        a("s_barrier")
        L.q = []
        D = 3
        def rd(ks):
            if ks >= 12: return
            cc, k4 = divmod(ks, 4)
            w = AF + 4 * (ks % 4)
            if kind in "qt":
                a(f"ds_read_b64_tr_b16 {vr(w,2)}, v{vW} offset:{ks*2304}\nds_read_b64_tr_b16 {vr(w+2,2)}, v{vW} offset:{ks*2304+576}")
                L.issue(); L.issue()
            else:
                a(f"ds_read_b128 {vr(w,4)}, v{vW+k4} offset:{cc*2176}"); L.issue()
            x = BFR + 8 * (ks % 4)
            if kind == "t":
                a(f"ds_read_b128 {vr(x+4,4)}, v{vX+k4} offset:{cc*8192+4096}"); L.issue()
            a(f"ds_read_b128 {vr(x,4)}, v{vX+k4} offset:{cc*8192}"); L.issue(f"s{ks}")
        for ks in range(D): rd(ks)
        for ks in range(12):
            rd(ks + D)
            L.wait(f"s{ks}")
            w = vr(AF + 4 * (ks % 4), 4); x = BFR + 8 * (ks % 4)
            if kind == "q":
                a(f"v_mfma_f32_32x32x16_bf16 {vr(ACC,16)}, {w}, {vr(x,4)}, {vr(ACC,16)}")
            elif kind == "u":
                a(f"v_mfma_f32_32x32x16_bf16 {vr(ACC,16)}, {vr(x,4)}, {w}, {vr(ACC,16)}")
            else:
                a(f"v_mfma_f32_16x16x32_bf16 {vr(ACC,4)}, {w}, {vr(x,4)}, {vr(ACC,4)}")
                a(f"v_mfma_f32_16x16x32_bf16 {vr(ACC+4,4)}, {w}, {vr(x+4,4)}, {vr(ACC+4,4)}")
        a(f"""s_cmp_eq_u32 s{JJ}, 0
        s_mov_b32 s8, {(G0-G1) & 0xffffffff}
        s_cselect_b32 s8, {G1-G0}, s8
        s_cbranch_scc0 {ls}
        s_barrier
        {ls}:""")
        for k in range(4 if kind == "u" else 1):
            a(f"v_add_u32 v{vW+k}, s8, v{vW+k}")
        a(f"""s_add_u32 s{ROT}, s{ROT}, 1
        s_cmp_eq_u32 s{ROT}, 3
        s_cselect_b32 s{ROT}, 0, s{ROT}
        s_add_u32 s{JJ}, s{JJ}, 1
        s_cmp_lt_u32 s{JJ}, 3
        s_cbranch_scc1 {lp}""")
        if kind == "q":
            a("v_and_b32 v1, 7, v0")
            lanepart(2, 1, 3)
            a(f"""v_bfe_u32 v1, v0, 3, 2
            v_lshl_add_u32 v2, v1, 1, v2
            v_mul_u32_u24 v2, 144, v2
            v_lshrrev_b32 v1, 5, v0
            v_lshl_add_u32 v2, v1, 3, v2
            s_mul_i32 s8, s{MM}, {8*144}
            s_lshr_b32 s9, s{WV}, 1
            s_lshl_b32 s9, s9, 6
            s_add_u32 s8, s8, s9
            s_add_u32 s8, s8, {QX}
            v_add_u32 v2, s8, v2
            s_mov_b32 s8, {f2u(QC)}""")
            for q in range(4):
                for r in range(4):
                    a(f"v_mul_f32 v{ACC+4*q+r}, s8, v{ACC+4*q+r}")
                a(f"""v_cvt_pk_bf16_f32 v{ACC+4*q}, v{ACC+4*q}, v{ACC+4*q+1}
                v_cvt_pk_bf16_f32 v{ACC+4*q+1}, v{ACC+4*q+2}, v{ACC+4*q+3}
                ds_write_b64 v2, {vr(ACC+4*q,2)} offset:{16*q}""")
        elif kind == "t":
            a("v_and_b32 v1, 7, v0")
            lanepart(2, 1, 3)
            a(f"""v_bfe_u32 v1, v0, 3, 1
            v_lshl_add_u32 v2, v1, 1, v2
            v_lshrrev_b32 v1, 5, v0
            v_lshl_add_u32 v2, v1, 2, v2
            v_mul_u32_u24 v2, 144, v2
            v_bfe_u32 v1, v0, 4, 1
            v_lshl_add_u32 v2, v1, 3, v2
            v_add_u32 v2, {QX+128}, v2
            s_mov_b32 s8, {f2u(QC)}""")
            for q in range(2):
                for r in range(4):
                    a(f"v_mul_f32 v{ACC+4*q+r}, s8, v{ACC+4*q+r}")
                a(f"""v_cvt_pk_bf16_f32 v{ACC+4*q}, v{ACC+4*q}, v{ACC+4*q+1}
                v_cvt_pk_bf16_f32 v{ACC+4*q+1}, v{ACC+4*q+2}, v{ACC+4*q+3}
                ds_write_b64 v2, {vr(ACC+4*q,2)} offset:{8*144*q}""")
        else:
            a(f"""v_and_b32 v1, 31, v0
            v_mul_u32_u24 v2, 272, v1
            v_add_u32 v2, {U5B}, v2
            v_mov_b32 v3, {LOGIT}
            v_cmp_eq_u32 vcc, 16, v1
            v_cndmask_b32 v2, v2, v3, vcc
            v_mov_b32 v3, {OOB}
            v_cmp_lt_u32 vcc, 16, v1
            v_cndmask_b32 v2, v2, v3, vcc
            v_lshrrev_b32 v1, 5, v0
            v_lshl_add_u32 v2, v1, 7, v2
            s_lshl_b32 s8, s{MM}, 6
            v_add_u32 v2, s8, v2""")
            for q in range(4):
                a(f"ds_write_b128 v2, {vr(ACC+4*q,4)} offset:{16*q}")
        a("s_branch L_pre_done")

    a(f"""s_cmp_ge_u32 s{WV}, 6
    s_cbranch_scc1 L_job_u
    s_cmp_eq_u32 s{WV}, 5
    s_cbranch_scc1 L_job_t
    s_cmp_eq_u32 s{WV}, 4
    s_cbranch_scc1 L_job_kv""")
    job_loop("q")
    a("L_job_t:"); job_loop("t")
    a("L_job_u:"); job_loop("u")

    a("L_job_kv:")
    vKX, vKW = 8, 10
    a(f"""s_setprio 3
    s_and_b32 s8, s{CG}, 3
    s_lshl_b32 s9, s8, 11
    v_and_b32 v1, 15, v0
    v_lshrrev_b32 v2, 4, v0          ; G
    v_lshrrev_b32 v3, 1, v1
    v_xor_b32 v3, v3, v2
    v_lshlrev_b32 v3, 4, v3
    v_lshl_add_u32 v3, v1, 7, v3
    v_add_u32 v{vKX}, s9, v3
    v_xor_b32 v{vKX+1}, 64, v{vKX}
    v_bfe_u32 v1, v0, 2, 2
    v_lshl_add_u32 v1, v2, 3, v1
    v_mul_u32_u24 v1, 48, v1
    v_and_b32 v3, 3, v0
    v_lshl_add_u32 v{vKW}, v3, 3, v1
    v_add_u32 v{vKW}, {G1}, v{vKW}
    v_lshl_add_u32 v{vKW+1}, v3, 18, v1
    v_add_u32 v{vKW+1}, {G1+32}, v{vKW+1}
    s_lshl_b32 s12, s{RB}, 1
    s_lshr_b32 s9, s8, 1
    s_add_u32 s12, s12, s9
    s_mul_i32 s12, s12, 2560
    s_add_u32 s12, s12, {WS_KV}
    s_and_b32 s13, s8, 1""")
    make_nonce()
    a("s_barrier")
    stamp(1)

    def kv_gemm(isk):
        L.q = []
        def rd(st):
            if st >= 18: return
            b = 32 + 12 * (st % 4)
            if st == 16:
                a(f"v_add_u32 v{vKX}, 65536, v{vKX}\nv_add_u32 v{vKX+1}, 65536, v{vKX+1}")
            c = (st // 2) % 8
            a(f"ds_read_b128 {vr(b,4)}, v{vKX + st%2} offset:{c*8192}"); L.issue()
            for t in range(2):
                a(f"ds_read_b64_tr_b16 {vr(b+4+4*t,2)}, v{vKW+t} offset:{st*1536}\nds_read_b64_tr_b16 {vr(b+6+4*t,2)}, v{vKW+t} offset:{st*1536+192}")
                L.issue(); L.issue(f"s{st}")
        for st in range(3): rd(st)
        for st in range(18):
            L.wait(f"s{st}")
            rd(st + 3)
            b = 32 + 12 * (st % 4)
            for t in range(2):
                x, w = vr(b, 4), vr(b + 4 + 4 * t, 4)
                d = vr(16 + 4 * t, 4)
                A, B = (w, x) if isk else (x, w)
                a(f"v_mfma_f32_16x16x32_bf16 {d}, {A}, {B}, {'0' if st == 0 else d}")
        a(f"""v_and_b32 v1, 15, v0
        v_lshrrev_b32 v2, 5, v0
        v_bfe_u32 v3, v0, 4, 1
        v_mov_b32 v28, {GOOB}""")
        if isk:
            a(f"""s_lshl_b32 s8, s13, 4
            v_add_u32 v1, s8, v1
            v_lshlrev_b32 v2, 9, v2
            v_lshl_add_u32 v2, v1, 4, v2
            v_lshl_add_u32 v2, v3, 3, v2
            v_lshlrev_b32 v1, 2, v1
            s_mov_b64 vcc, 0xffff
            v_cndmask_b32 v1, v28, v1, vcc
            v_cvt_pk_bf16_f32 v24, v16, v17
            v_cvt_pk_bf16_f32 v25, v18, v19
            v_cvt_pk_bf16_f32 v26, v20, v21
            buffer_store_dwordx2 v[24:25], v2, s[{S_WS}:{S_WS+3}], s12 offen sc1
            buffer_store_dword v26, v1, s[{S_WS}:{S_WS+3}], s12 offen offset:2304 sc1
            v_cndmask_b32 v26, 0, v26, vcc
            v_mov_b32 v31, 0
            v_dot2c_f32_bf16 v31, v24, v24
            v_dot2c_f32_bf16 v31, v25, v25
            v_dot2c_f32_bf16 v31, v26, v26
            v_mov_b32 v30, v31
            v_permlane16_swap_b32 v30, v31
            v_add_f32 v31, v30, v31
            v_mov_b32 v30, v31
            v_permlane32_swap_b32 v30, v31
            v_add_f32 v31, v30, v31""")
            for r in (8, 4, 2, 1):
                a(f"v_max_f32_dpp v31, v31, v31 row_ror:{r} row_mask:0xf bank_mask:0xf")
        else:
            a(f"""s_mul_i32 s8, s13, 640
            s_add_u32 s12, s12, s8
            v_mul_u32_u24 v2, 19, v2
            v_add_u32 v2, v2, v1
            v_lshlrev_b32 v2, 4, v2
            v_lshl_add_u32 v2, v3, 3, v2
            v_cmp_gt_u32 vcc, 3, v1
            v_cndmask_b32 v3, v28, v2, vcc
            v_cvt_pk_bf16_f32 v24, v16, v17
            v_cvt_pk_bf16_f32 v25, v18, v19
            v_cvt_pk_bf16_f32 v26, v20, v21
            v_cvt_pk_bf16_f32 v27, v22, v23
            v_mov_b32 v29, 0x3f803f80
            v_cmp_eq_u32 vcc, 2, v1
            v_cndmask_b32 v26, v26, v29, vcc
            v_cndmask_b32 v27, v27, v29, vcc
            buffer_store_dwordx2 v[24:25], v2, s[{S_WS}:{S_WS+3}], s12 offen offset:1024 sc1
            buffer_store_dwordx2 v[26:27], v3, s[{S_WS}:{S_WS+3}], s12 offen offset:1280 sc1
            v_mov_b32 v31, 0""")
    lv, lj = a.lab("kvv"), a.lab("kvj")
    a(f"s_cmp_ge_u32 s{CG}, 4\ns_cbranch_scc1 {lv}")
    kv_gemm(True)
    a(f"s_branch {lj}\n{lv}:")
    kv_gemm(False)
    a(f"{lj}:")
    stamp(2)
    a(f"""s_barrier
    s_lshl_b32 s8, s{RB}, 3
    s_add_u32 s8, s8, s{CG}
    s_lshl_b32 s8, s8, 3
    s_add_u32 s8, s8, {WS_KVFLAG}
    v_mov_b32 v30, s{NONCE}
    v_mov_b32 v1, 0
    s_waitcnt vmcnt(0)
    s_mov_b64 exec, 1
    buffer_store_dwordx2 v[30:31], v1, s[{S_WS}:{S_WS+3}], s8 offen sc1
    s_mov_b64 exec, -1""")
    stamp(3)
    a("s_barrier\ns_barrier\ns_barrier")

    a("L_pre_done:")
    S, O, Q16, QXR, K16, KX, V1, V2 = 16, 80, 96, 100, 102, 106, 108, 112
    vK, vKx, vV, vIDX, vONE, vAW, vAR, vCHK, vDMA, vWQ = 2, 3, 4, 5, 6, 7, 8, 9, 10, 11
    HD, NEED, IT = 83, 84, 85
    S_D = 56
    DLB, DLS, DGB, DGS, DI, DL2, DG2 = 86, 87, 88, 89, 90, 91, 92
    a(f"""s_lshr_b32 s{HD}, s{WV}, 1
    v_lshlrev_b32 v{vDMA}, 4, v0
    v_add_u32 v{vK}, {RING}, v{vDMA}
    v_lshrrev_b32 v116, 5, v0        ; h
    v_and_b32 v117, 31, v0           ; i
    v_lshlrev_b32 v1, 18, v116
    v_lshl_add_u32 v1, v117, 2, v1
    v_add_u32 v{vKx}, {RING+2304}, v1
    v_lshrrev_b32 v1, 1, v117
    v_xor_b32 v1, v1, v117
    v_and_b32 v1, 4, v1
    v_mul_u32_u24 v1, 3, v1
    v_xor_b32 v1, v1, v117
    v_mad_u32_u24 v1, v116, 19, v1
    v_lshlrev_b32 v1, 4, v1
    v_add_u32 v1, {RING+1024}, v1
    v_mov_b32 v118, {OOB}
    v_cmp_gt_u32 vcc, 19, v117
    v_cndmask_b32 v{vV}, v118, v1, vcc
    v_mov_b32 v{vIDX}, 0xdddddddd
    v_mov_b32 v{vONE}, 1
    s_lshl_b32 s8, s{WV}, 2
    s_add_u32 s8, s8, {ARR}
    v_mov_b32 v1, s8
    v_cmp_eq_u32 vcc, 0, v0
    v_cndmask_b32 v{vAW}, v118, v1, vcc
    v_and_b32 v1, 15, v0
    v_min_u32 v1, 8, v1
    v_lshlrev_b32 v1, 2, v1
    v_add_u32 v{vAR}, {ARR}, v1
    v_mul_u32_u24 v1, 57, v0
    v_lshrrev_b32 v1, 9, v1
    v_mul_u32_u24 v1, 1008, v1
    v_add_u32 v{vWQ}, v1, v{vDMA}
    s_lshl_b32 s8, s{MM}, 5
    v_add_u32 v119, s8, v117
    v_mul_u32_u24 v120, 144, v119
    s_mul_i32 s8, s{HD}, 36
    s_add_u32 s8, s8, {QX}
    v_add_u32 v120, s8, v120
    v_lshl_add_u32 v121, v116, 18, v120
    v_lshl_add_u32 v120, v116, 4, v120
    v_mov_b32 v122, {KMAX}
    s_mov_b32 s{S_D}, s{S_WS}
    s_mov_b32 s{S_D+1}, s{S_WS+1}
    s_mov_b32 s{S_D+2}, s{S_WS+2}
    s_mov_b32 s{S_D+3}, 0x20000
    s_mul_i32 s8, s{WV}, 640
    s_add_u32 s{DLB}, s8, {RING}
    s_add_u32 s{DGB}, s8, {WS_KV}
    s_mov_b32 s{DLS}, 10240
    s_mov_b32 s{DGS}, 10240
    s_mov_b32 s{DL2}, 5120
    s_mov_b32 s{DG2}, 5120
    s_add_u32 s{DI}, s{IDX}, 2
    s_and_b32 s{DI}, s{DI}, 15
    s_mov_b32 s{NEED}, 0
    s_mov_b32 s{IT}, 0
    v_mov_b32 v{KX+1}, 0x3f803f80""")
    for r in range(16): a(f"v_mov_b32 v{O+r}, 0")
    for r in range(4): a(f"v_mov_b32 v{V2+r}, 0")
    a("s_waitcnt lgkmcnt(0)")
    for r in range(8): a(f"v_mov_b32 v{S+56+r}, 0")
    stamp(4)
    a("s_barrier")
    stamp(5)

    def ring_dma(slot):
        a(f"""s_mul_i32 s8, s{DLS}, {slot}
        s_mul_i32 s9, s{DI}, s{DGS}
        s_add_u32 m0, s8, s{DLB}
        s_add_u32 s9, s9, s{DGB}
        s_mov_b32 exec_hi, 0xff
        buffer_load_dwordx4 v{vDMA}, s[{S_D}:{S_D+3}], s9 offen sc1 lds
        s_add_u32 m0, m0, s{DL2}
        s_add_u32 s9, s9, s{DG2}
        buffer_load_dwordx4 v{vDMA}, s[{S_D}:{S_D+3}], s9 offen sc1 lds
        s_mov_b32 exec_hi, -1
        s_add_u32 s{DI}, s{DI}, 1
        s_and_b32 s{DI}, s{DI}, 15""")
    a(f"""s_setprio {cfg.att_prio}
    ds_read_b128 {vr(Q16,4)}, v120
    ds_read_b32 v{QXR}, v121 offset:32
    ds_read_b128 v[124:127], v122
    ds_read_b128 {vr(K16,4)}, v{vK}
    ds_read_b32 v{KX}, v{vKx}""")
    ring_dma(2)
    a(f"""v_mov_b32 v123, 0
    s_waitcnt lgkmcnt(2)
    v_dot2c_f32_bf16 v123, v{Q16}, v{Q16}
    v_dot2c_f32_bf16 v123, v{Q16+1}, v{Q16+1}
    v_dot2c_f32_bf16 v123, v{Q16+2}, v{Q16+2}
    v_dot2c_f32_bf16 v123, v{Q16+3}, v{Q16+3}
    v_dot2c_f32_bf16 v123, v{QXR}, v{QXR}
    v_max3_f32 v124, v124, v125, v126
    v_max_f32 v124, v124, v127
    v_mov_b32 v125, v123
    v_permlane32_swap_b32 v125, v123
    v_add_f32 v123, v125, v123
    v_mul_f32 v123, v123, v124
    v_sqrt_f32 v123, v123
    v_mul_f32 v123, {f2u(1.001)}, v123
    v_cmp_nge_f32 vcc, {f2u(cfg.thr)}, v123
    s_cbranch_vccnz L_fallback
    L_have_max:
    v_xor_b32 v123, 0x80000000, v123
    v_and_b32 v124, 0xffff0000, v123
    v_sub_f32 v123, v123, v124
    v_and_b32 v125, 0xffff0000, v123
    v_sub_f32 v123, v123, v125
    v_lshrrev_b32 v124, 16, v124
    v_or_b32 v124, v124, v125
    v_lshrrev_b32 v123, 16, v123
    s_mov_b32 vcc_lo, -1\ns_mov_b32 vcc_hi, 0
    v_cndmask_b32 v{QXR+1}, v123, v124, vcc
    s_waitcnt lgkmcnt(0)
    v_mfma_f32_32x32x16_bf16 {vr(S,16)}, {vr(K16,4)}, {vr(Q16,4)}, 0
    ds_read_b128 {vr(K16,4)}, v{vK} offset:2560
    v_mfma_f32_32x32x8_bf16 {vr(S,16)}, {vr(KX,2)}, {vr(QXR,2)}, {vr(S,16)}
    ds_read_b32 v{KX}, v{vKx} offset:2560
    ds_read_b128 {vr(V1,4)}, v{vV}
    s_nop 7""")
    stamp(6)
    a(".p2align 6\nL_aloop:")
    slow = []
    T_ = lambda k: 2560 * (k % 16)
    for u in range(16):
        Su, Sn, Sp = S + 16 * (u % 4), S + 16 * ((u + 1) % 4), S + 16 * ((u - 1) % 4)
        e = lambda x, y: a("\n".join(f"v_exp_f32 v{Su+i}, v{Su+i}" for i in range(x, y)))
        extra = 0
        if u % 4 == 2:
            a("s_waitcnt lgkmcnt(0)")
            ls, lr = a.lab("slow"), a.lab("ret")
            slow.append((ls, lr))
            a(f"v_cmp_gt_u32 vcc, s{NEED}, v{vCHK}\ns_cbranch_vccnz {ls}\n{lr}:")
            if u == 6:
                lsw = a.lab("nosw")
                a(f"""s_cmp_lg_u32 s{IT}, 3
                s_cbranch_scc1 {lsw}
                s_mov_b32 s{S_D}, s{P_WO}
                s_mov_b32 s{S_D+1}, s{P_WO+1}
                s_mov_b32 s{S_D+2}, {MAT}
                v_mov_b32 v{vDMA}, v{vWQ}
                s_mul_i32 s8, s{WV}, 576
                s_add_u32 s{DLB}, s8, {WO}
                s_mov_b32 s{DLS}, 9216
                s_mov_b32 s{DL2}, 4608
                s_mul_i32 s8, s{WV}, 4608
                s_mul_i32 s9, s{CG}, 144
                s_add_u32 s{DGB}, s8, s9
                s_mov_b32 s{DGS}, {64*1152}
                s_mov_b32 s{DG2}, {32*1152}
                s_mov_b32 s{DI}, 0
                {lsw}:""")
            ring_dma((u // 4 + 3) % 4)
        else:
            a("s_waitcnt lgkmcnt(1)")
        if u % 4 == 0:
            a(f"s_waitcnt vmcnt(2)\nds_add_u32 v{vAW}, v{vONE}\ns_add_u32 s{NEED}, s{NEED}, 1")
            extra = 1
        a(f"v_mfma_f32_32x32x16_bf16 {vr(Sn,16)}, {vr(K16,4)}, {vr(Q16,4)}, 0")
        a(f"ds_read_b128 {vr(K16,4)}, v{vK} offset:{T_(u+2)}")
        e(0, 4)
        a(f"v_mfma_f32_32x32x8_bf16 {vr(Sn,16)}, {vr(KX,2)}, {vr(QXR,2)}, {vr(Sn,16)}")
        a(f"ds_read_b32 v{KX}, v{vKx} offset:{T_(u+2)}")
        e(4, 8)
        a(f"v_smfmac_f32_32x32x32_bf16 {vr(O,16)}, {vr(V2,4)}, {vr(Sp+8,8)}, v{vIDX}")
        a(f"ds_read_b128 {vr(V2,4)}, v{vV} offset:{T_(u)+640}")
        e(8, 12)
        if u % 4 != 2:
            a(f"s_waitcnt lgkmcnt({3+extra})")
        a(f"v_smfmac_f32_32x32x32_bf16 {vr(O,16)}, {vr(V1,4)}, {vr(Su,8)}, v{vIDX}")
        a(f"ds_read_b128 {vr(V1,4)}, v{vV} offset:{T_(u+1)}")
        if u % 4 == 1:
            a(f"ds_read_b32 v{vCHK}, v{vAR}")
        e(12, 16)
    a(f"""s_add_u32 s{IT}, s{IT}, 1
    s_cmp_lt_u32 s{IT}, 4
    s_cbranch_scc1 L_aloop
    s_waitcnt lgkmcnt(0)
    ds_add_u32 v{vAW}, v{vONE}
    v_smfmac_f32_32x32x32_bf16 {vr(O,16)}, {vr(V2,4)}, {vr(S+56,8)}, v{vIDX}
    v_lshlrev_b32 v1, 3, v119
    v_add_u32 v1, {GT}, v1
    ds_read_b32 v123, v1 offset:4
    v_lshlrev_b32 v120, 4, v119
    v_lshl_add_u32 v121, v116, 10, v120
    v_lshl_add_u32 v120, v116, 30, v120
    s_mul_i32 s8, s{RB}, 73728
    s_add_u32 s8, s8, {WS_O}
    s_lshl_b32 s10, s{CG}, 2
    s_add_u32 s10, s10, s{HD}
    s_lshl_b32 s9, s10, 11
    s_add_u32 s9, s9, s8
    s_lshl_b32 s11, s{CG}, 10
    s_add_u32 s8, s8, s11
    s_lshl_b32 s11, s{HD}, 2
    s_add_u32 s8, s8, s11
    s_add_u32 s8, s8, 65536""")
    stamp(7)
    a(f"""v_mov_b32 v122, v{O+10}
    v_permlane32_swap_b32 v{O+10}, v122
    v_rcp_f32 v122, v{O+10}
    s_waitcnt lgkmcnt(0)
    v_mul_f32 v122, v122, v123""")
    for r in range(10): a(f"v_mul_f32 v{O+r}, v{O+r}, v122")
    for r in range(5): a(f"v_cvt_pk_bf16_f32 v{16+r}, v{O+2*r}, v{O+2*r+1}")
    a(f"""buffer_store_dwordx4 v[16:19], v121, s[{S_WS}:{S_WS+3}], s9 offen sc1
    buffer_store_dword v20, v120, s[{S_WS}:{S_WS+3}], s8 offen sc1
    s_lshl_b32 s12, s{RB}, 1
    s_add_u32 s12, s12, s{MM}
    s_lshl_b32 s12, s12, 5
    s_add_u32 s12, s12, s10
    s_lshl_b32 s12, s12, 2
    s_add_u32 s12, s12, {WS_OFLAG}""")
    S_X, S_OUT, S_DK = 60, 64, 68
    srd(S_X, P_X, 2048 * 1152)
    srd(S_OUT, P_OUT, 2048 * 2304)
    srd(S_DK, P_DSK, 1152)
    FO, FL, FX, FD, FG, FB, FP = 24, 27, 28, 34, 40, 44, 56
    a(f"""s_lshl_b32 s8, s{RB}, 3
    s_add_u32 s8, s8, s{WV}
    s_mul_i32 s8, s8, {8*2304}
    s_mul_i32 s9, s{CG}, 288
    s_add_u32 s13, s8, s9            ; out soffset
    s_mul_i32 s8, s{WV}, {144*16}
    v_lshlrev_b32 v{FL}, 4, v0
    v_add_u32 v{FL}, s8, v{FL}
    s_lshl_b32 s11, s{WV}, 6
    s_add_u32 s11, s11, {GT}""")
    for i in range(3):
        a(f"""v_add_u32 v1, {64*i}, v0
        v_mul_u32_u24 v21, 57, v1
        v_lshrrev_b32 v21, 10, v21         ; row
        v_lshlrev_b32 v1, 4, v1
        v_mul_u32_u24 v22, 2016, v21
        v_add_u32 v{FO+i}, v1, v22
        v_mul_u32_u24 v22, 288, v21
        v_sub_u32 v22, v1, v22
        v_lshrrev_b32 v{FD+2*i}, 1, v22    ; cq*8
        v_lshl_add_u32 v{FG+i}, v21, 3, s11""")
    a(f"""v_mov_b32 v1, {GOOB}
    s_mov_b64 vcc, 0xffff
    v_cndmask_b32 v{FO+2}, v1, v{FO+2}, vcc
    s_waitcnt vmcnt(0)""")
    flag_store(22, "s12")
    stamp(8)
    a(f"s_lshr_b32 s8, s13, 1\ns_mul_i32 s9, s{CG}, 144")
    for i in range(3):
        a(f"""v_lshrrev_b32 v1, 1, v{FO+i}
        buffer_load_dwordx2 {vr(FX+2*i,2)}, v1, s[{S_X}:{S_X+3}], s8 offen
        buffer_load_dwordx2 {vr(FD+2*i,2)}, v{FD+2*i}, s[{S_DK}:{S_DK+3}], s9 offen
        ds_read_b32 v{FG+i}, v{FG+i}""")
    lds_wait(1, vAR, 17)
    a(f"""s_mul_i32 s8, s{WV}, {6*144}
    s_mul_i32 s9, s{WV}, {6*1152}
    s_mul_i32 s10, s{CG}, 144
    s_add_u32 s9, s9, s10
    s_mov_b32 exec_hi, 0x3fffff""")
    for i in range(2):
        a(f"s_add_u32 m0, s8, {WO + (192+48*i)*144}\ns_add_u32 s14, s9, {(192+48*i)*1152}\nbuffer_load_dwordx4 v{vWQ}, s[{S_D}:{S_D+3}], s14 offen lds")
    a("s_mov_b32 exec_hi, -1\ns_waitcnt vmcnt(2)")
    for i in range(3):
        for j in range(2):
            x, d, o = FX + 2 * i + j, FD + 2 * i + j, FB + 4 * i + 2 * j
            a(f"""v_lshlrev_b32 v1, 16, v{x}
            v_lshlrev_b32 v21, 16, v{d}
            v_and_b32 v{x}, 0xffff0000, v{x}
            v_and_b32 v{d}, 0xffff0000, v{d}
            v_mul_f32 v1, v1, v21
            v_mul_f32 v{x}, v{x}, v{d}
            v_cvt_pk_bf16_f32 v1, v1, v{x}
            v_lshlrev_b32 v{o}, 16, v1
            v_and_b32 v{o+1}, 0xffff0000, v1""")
    a("s_waitcnt vmcnt(0)")
    stamp(9)
    a("s_barrier")
    for i in range(3):
        for p in range(4):
            a(f"ds_read_b128 {vr(FP+16*i+4*p,4)}, v{FL} offset:{18432*p + 1024*i}")
    for i in range(3):
        a(f"s_waitcnt lgkmcnt({8-4*i})")
        b = FP + 16 * i
        for r in range(4):
            a(f"""v_add_f32 v{b+r}, v{b+r}, v{b+4+r}
            v_add_f32 v{b+8+r}, v{b+8+r}, v{b+12+r}
            v_add_f32 v{b+r}, v{b+r}, v{b+8+r}
            v_fmac_f32 v{FB+4*i+r}, 2.0, v{b+r}
            v_mul_f32 v{FB+4*i+r}, v{FB+4*i+r}, v{FG+i}""")
    stamp(10)
    a("s_barrier")
    a("s_barrier")
    for i in range(3):
        for p in range(2):
            a(f"ds_read_b128 {vr(FP+8*i+4*p,4)}, v{FL} offset:{18432*p + 1024*i}")
    for i in range(3):
        a(f"s_waitcnt lgkmcnt({4-2*i})")
        b = FP + 8 * i
        for r in range(4):
            a(f"v_add_f32 v{b+r}, v{b+r}, v{b+4+r}\nv_add_f32 v{b+r}, v{b+r}, v{FB+4*i+r}")
        a(f"buffer_store_dwordx4 {vr(b,4)}, v{FO+i}, s[{S_OUT}:{S_OUT+3}], s13 offen")
    if cfg.prof:
        stamp(11)
        a("s_waitcnt vmcnt(0)")
        stamp(12)
    prof_out()
    a("L_end:\ns_endpgm")

    for ls, lr in slow:
        a(f"{ls}:")
        lds_wait(vCHK, vAR, f"s{NEED}", sleep=1)
        a(f"s_branch {lr}")

    a(f"""L_fallback:
    v_mov_b32 v{QXR+1}, 0
    v_mov_b32 v123, 0xff7fffff
    v_lshlrev_b32 v124, 2, v117
    v_lshl_add_u32 v124, v116, 30, v124
    v_mov_b32 v133, 0x3f803f80
    s_mov_b32 s8, {WS_KV}
    L_fb_loop:
    buffer_load_dwordx4 v[128:131], v{vDMA}, s[{S_WS}:{S_WS+3}], s8 offen sc1
    buffer_load_dword v132, v124, s[{S_WS}:{S_WS+3}], s8 offen offset:2304 sc1
    s_waitcnt vmcnt(0)
    v_mfma_f32_32x32x16_bf16 {vr(S,16)}, v[128:131], {vr(Q16,4)}, 0
    v_mfma_f32_32x32x8_bf16 {vr(S,16)}, v[132:133], {vr(QXR,2)}, {vr(S,16)}""")
    for r in range(8):
        a(f"v_max3_f32 v123, v123, v{S+2*r}, v{S+2*r+1}")
    a(f"""s_add_u32 s8, s8, 2560
    s_cmp_lt_u32 s8, {WS_KV + 64*2560}
    s_cbranch_scc1 L_fb_loop
    v_mov_b32 v125, v123
    v_permlane32_swap_b32 v125, v123
    v_max_f32 v123, v125, v123
    s_branch L_have_max""")

    body = a.finalize()
    hdr = open("cdna_kernels/" + NAME + ".s.ref").read().split("; Override launch")[0]
    return f"""{hdr}; @launch grid=(256,1,1) block=(768,1,1) lds={LDS_SIZE}
.amdgcn_target "amdgcn-amd-amdhsa--gfx950"
.text
.globl {NAME}_kernel
.p2align 8
.type {NAME}_kernel,@function
{NAME}_kernel:
{body}
.section .rodata,"a"
.p2align 6
.amdhsa_kernel {NAME}_kernel
  .amdhsa_next_free_vgpr 168
  .amdhsa_next_free_sgpr 102
  .amdhsa_accum_offset 168
  .amdhsa_group_segment_fixed_size 0
  .amdhsa_kernarg_size 144
  .amdhsa_user_sgpr_count 2
  .amdhsa_user_sgpr_kernarg_segment_ptr 1
  .amdhsa_system_sgpr_workgroup_id_x 1
.end_amdhsa_kernel
"""


if __name__ == "__main__":
    cfg = Cfg()
    out = "cdna_kernels/" + NAME + ".s"
    for arg in sys.argv[1:]:
        k, v = arg.split("=", 1)
        if k == "out":
            out = v
        else:
            setattr(cfg, k, eval(v))
    open(out, "w").write(build(cfg))
    print("wrote", out)
```
